```python
import torch

def _softmax(x, axis=-1):
    return torch.softmax(x, dim=axis)
def _gelu(x):
    return torch.nn.functional.gelu(x, approximate="tanh")
def _silu(x):
    return torch.nn.functional.silu(x)
def _sigmoid(x):
    return torch.sigmoid(x)
def _layernorm(x, axis=-1, eps=1e-5):
    m = x.mean(dim=axis, keepdim=True)
    v = x.var(dim=axis, keepdim=True, unbiased=False)
    return (x - m) / torch.sqrt(v + eps)
def _scatter_add(tgt, idx, src, axis=0):
    return tgt.clone().index_add_(axis, idx, src)
def _segment_sum(src, seg, n):
    out = torch.zeros((n,) + src.shape[1:], dtype=src.dtype)
    return out.index_add_(0, seg, src)
def _pad(x, pw):
    flat = tuple(v for pair in reversed(pw) for v in pair)
    return torch.nn.functional.pad(x, flat)

kernel_name = 'standalone__ragged_sequences_packed_sequences__ragged'

def setup_inputs():

    _w = (lambda a: (lambda t: t.to(torch.bfloat16) if t.is_floating_point() else t)(torch.as_tensor(a)))
    cu = torch.tensor([0, 369, 582, 865, 1200], dtype=torch.int64)
    T = int(cu[-1])
    H, D = 16, 128
    lens = torch.diff(cu)
    seg_ids = torch.repeat_interleave(torch.arange(len(lens), dtype=torch.int64), lens)
    return {
        "q": _w((lambda *s: torch.randn(*s, dtype=torch.bfloat16) * 0.8)(T, H, D)),
        "k": _w((lambda *s: torch.randn(*s, dtype=torch.bfloat16) * 0.8)(T, H, D)),
        "v": _w((lambda *s: torch.randn(*s, dtype=torch.bfloat16) * 0.05)(T, H, D)),
        "seg_ids": _w(seg_ids),
    }

def reference(q, k, v, seg_ids):
    T, H, D = q.shape
    scale = D ** -0.5
    same_seq = seg_ids[:, None] == seg_ids[None, :]
    logits = torch.einsum("qhd,khd->hqk", q, k) * scale
    bias = (1.0 - (lambda x, dt: x.to(dt))(same_seq, q.dtype)) * (-1e9)
    p = _softmax(logits + bias[None, :, :], axis=-1)
    return torch.einsum("hqk,khd->qhd", p, v)
```

```python
import re
TRANS = ("v_exp_f32", "v_log_f32", "v_rcp_f32", "v_rsq_f32", "v_sqrt_f32", "v_sin_f32", "v_cos_f32")

def regs(tok):
    tok = tok.strip()
    neg = tok.lstrip("-").strip("|")
    m = re.fullmatch(r"([vsa])\[(\d+):(\d+)\]", neg)
    if m: return [(m.group(1), i) for i in range(int(m.group(2)), int(m.group(3)) + 1)]
    m = re.fullmatch(r"([vsa])(\d+)", neg)
    if m: return [(m.group(1), int(m.group(2)))]
    if neg == "vcc": return [("s", "vcc")]
    if neg in ("vcc_lo", "vcc_hi"): return [("s", "vcc")]
    if neg == "m0": return [("s", "m0")]
    if neg == "exec": return [("s", "exec")]
    return []

class Ins:
    def __init__(self, text):
        self.text = text
        t = text.split(";")[0].strip()
        parts = t.split(None, 1)
        self.op = parts[0]
        rest = parts[1] if len(parts) > 1 else ""
        ops = [x.strip() for x in rest.split(",")] if rest else []
        self.mods = ""
        if ops:
            last = ops[-1].split(None, 1)
            ops[-1] = last[0]
            self.mods = last[1] if len(last) > 1 else ""
        self.ops = ops
        op = self.op
        self.kind = ("mfma" if op.startswith("v_mfma") else "valu" if op.startswith("v_") else
                     "ds" if op.startswith("ds_") else "vmem" if op.startswith(("buffer_", "global_")) else "salu")
        R = [regs(o) for o in ops]
        self.defs, self.uses = [], []
        self.srcc = []
        if self.kind == "mfma":
            self.defs = R[0]; self.ab = R[1] + R[2]; self.srcc = R[3]; self.uses = self.ab + self.srcc
            self.passes = 8 if "32x32" in op else 4
        elif self.kind == "valu":
            if op.startswith("v_permlane") and "swap" in op:
                self.defs = R[0] + R[1]; self.uses = R[0] + R[1]
            elif op.startswith("v_cmp"):
                self.defs = R[0]; self.uses = sum(R[1:], [])
            elif op.startswith("v_cndmask") and len(ops) == 3:
                self.defs = R[0]; self.uses = sum(R[1:], []) + [("s", "vcc")]
            elif op.startswith(("v_fmac", "v_writelane", "v_dot2c", "v_mac")):
                self.defs = R[0]; self.uses = sum(R, [])
            else:
                self.defs = R[0]; self.uses = sum(R[1:], [])
        elif self.kind == "ds":
            if "read" in op: self.defs = R[0]; self.uses = sum(R[1:], [])
            else: self.uses = sum(R, [])
        elif self.kind == "vmem":
            if "load" in op and "lds" not in self.mods.split():
                self.defs = R[0]; self.uses = sum(R[1:], [])
            elif "load" in op:
                self.uses = sum(R, []) + [("s", "m0")]
            else:
                self.uses = sum(R, []); self.sdata = R[0]
        else:
            if op.startswith(("s_cmp", "s_waitcnt", "s_nop", "s_barrier", "s_cbranch", "s_branch", "s_endpgm", "s_setprio")):
                self.uses = sum(R, [])
            else:
                self.defs = R[0] if R else []; self.uses = sum(R[1:], [])
        self.states = 1
        if op == "s_nop": self.states = int(ops[0]) + 1

def check(lines, name=""):
    ins = []
    for l in lines:
        for t in l.split("\n"):
            t = t.split(";")[0].strip()
            if not t or t.endswith(":") or t.startswith("."): continue
            ins.append(Ins(t))
    errs = []
    def ov(a, b): return set(a) & set(b)
    for i, c in enumerate(ins):
        d = 0
        for j in range(i - 1, max(-1, i - 24), -1):
            p = ins[j]
            need = 0; why = ""
            if p.kind == "valu":
                vd = [r for r in p.defs if r[0] in "va"]; sd = [r for r in p.defs if r[0] == "s"]
                if c.kind == "mfma" and ov(vd, c.uses): need, why = 2, "valu->mfma"
                if c.kind == "valu" and c.op.startswith("v_permlane") and ov(vd, c.uses): need, why = 2, "valu->permlane"
                if c.kind == "valu" and c.op.startswith(("v_readlane", "v_readfirstlane")) and ov(vd, c.uses): need, why = max(need, 1), "valu->readlane"
                if c.kind == "valu" and "dpp" in c.text and ov(vd, c.uses): need, why = 2, "valu->dpp"
                if p.op in TRANS and c.kind == "valu" and c.op not in TRANS and ov(vd, c.uses): need, why = max(need, 1), "trans->valu"
                if ("sdwa" in p.op or "op_sel" in p.mods) and c.kind == "valu" and ov(vd, c.uses + c.defs) and not p.op.startswith("v_pk_"): need, why = max(need, 1), "sdwa->valu"
                if p.op.startswith("v_dot") and ov(vd, c.uses + c.defs) and c.kind in ("valu", "mfma") and c.op != p.op: need, why = 3, "dot->"
                if c.kind == "valu" and ov(sd, c.uses): need, why = max(need, 4 if c.op.startswith(("v_readlane", "v_writelane")) else 2), "valu sgpr->valu"
                if c.kind == "vmem" and ov(sd, c.uses): need, why = 5, "valu sgpr->vmem"
            if p.kind == "mfma":
                n = 12 if p.passes == 8 else 8
                if c.kind in ("valu", "ds", "vmem") and ov(p.defs, c.uses + c.defs): need, why = n, "mfma D->" + c.kind
                if c.kind == "mfma":
                    if ov(p.defs, c.ab): need, why = n, "mfma D->AB"
                    elif ov(p.defs, c.srcc) and not (p.defs == c.srcc and p.passes == c.passes): need, why = n - 2, "mfma D->C partial"
                    elif ov(p.defs, c.defs) and not ov(p.defs, c.srcc): need, why = n, "mfma WAW"
                if c.kind == "valu" and ov(p.srcc, c.defs): need, why = max(need, 7 if p.passes == 8 else 3), why or "mfma C WAR"
            if p.kind == "salu" and ("s", "m0") in p.defs and c.kind == "vmem" and ("s", "m0") in c.uses: need, why = 1, "m0->dma"
            if p.kind == "vmem" and "store" in p.op and ("x4" in p.op or "x3" in p.op) and ov(p.sdata, c.defs): need, why = 2, "store data WAR"
            if need > d: errs.append(f"{name}: [{why}] need {need} got {d}: '{p.text}' -> '{c.text}'")
            d += p.states
    lg, vm = [], []
    for c in ins:
        if c.op == "s_waitcnt":
            t = c.text
            m = re.search(r"lgkmcnt\((\d+)\)", t)
            if m:
                n = int(m.group(1))
                if n == 0: lg = []
                elif not any(x[0] == "smem" for x in lg): lg = lg[len(lg) - n:] if len(lg) > n else lg
            m = re.search(r"vmcnt\((\d+)\)", t)
            if m:
                n = int(m.group(1)); vm = vm[len(vm) - n:] if n and len(vm) > n else ([] if n == 0 else vm)
            continue
        touched = set(c.uses) | set(c.defs)
        for q, nm in ((lg, "lgkm"), (vm, "vm")):
            for x in q:
                if x[1] & touched: errs.append(f"{name}: [{nm} pending] '{x[2]}' -> '{c.text}'")
        if c.kind == "ds": lg.append(("ds", set(c.defs), c.text))
        elif c.op.startswith(("s_load", "s_memtime", "s_memrealtime")): lg.append(("smem", set(c.defs), c.text))
        elif c.kind == "vmem": vm.append(("vm", set(c.defs), c.text))
        if len([x for x in lg]) > 15 and c.kind == "ds": pass
    return errs
```

```python
import sys, struct
from asmlib import check
KN = "standalone__ragged_sequences_packed_sequences__ragged_kernel"
HDR = open("standalone__ragged_sequences_packed_sequences__ragged.s.ref").read().split("; Override launch")[0]
SEG = {0: (0, 369), 1: (369, 213), 2: (582, 283), 3: (865, 335)}
C_SCALE = struct.unpack("<I", struct.pack("<f", (128 ** -0.5) * 1.4426950408889634))[0]
U = 6
KST, VST = 8320, 8192
KBASE, VBASE = 0, U * KST
QBASE = VBASE + U * VST
LDS = QBASE + 4 * KST
vK, vV, vQ, vG, vL, vT0, vT1 = 1, 2, 3, 4, 5, 6, 7
O, S, QF, KF, VF0, VF1, P = 8, (72, 88), 104, 136, 168, 184, 200
vOut, vT2, vT3, vQw = 208, 209, 210, 211
TMP = 212
def R(b, n): return f"v[{b}:{b+n-1}]"
MF = "v_mfma_f32_32x32x16_bf16"

def gen(stamps=False, store_mod="nt", prio=1):
    jobs = []
    for sg in (0, 3, 2, 1):
        st, ln = SEG[sg]; n = (ln + 31) // 32
        for q0 in range(0, n, 4): jobs.append((st, ln, n, q0 * 32))
    NJ = len(jobs); NWG = NJ * 16
    L = []; e = L.append
    paths = {}
    def stamp(i):
        if stamps: e(f"s_memtime s[{60+2*i}:{61+2*i}]")
    e(HDR + f"; @launch grid=({NWG},1,1) block=(512,1,1) lds={LDS}")
    e('.amdgcn_target "amdgcn-amd-amdhsa--gfx950"\n.text')
    e(f".globl {KN}\n.p2align 12\n.type {KN},@function\n{KN}:")
    i_start = len(L)
    stamp(0)
    if stamps: e("s_memrealtime s[84:85]")
    e(f"s_cmp_ge_u32 s2, {NWG}\ns_cbranch_scc1 L_end")
    e("s_load_dwordx4 s[4:7], s[0:1], 0\ns_load_dwordx2 s[8:9], s[0:1], 16\ns_load_dwordx2 s[10:11], s[0:1], 32")
    if stamps: e("s_load_dwordx2 s[12:13], s[0:1], 48")
    e("v_lshrrev_b32 v1, 6, v0\nv_and_b32 v0, 63, v0\nv_readfirstlane_b32 s14, v1")
    e("s_and_b32 s15, s2, 7\ns_lshr_b32 s16, s2, 3\ns_and_b32 s17, s16, 1\ns_lshr_b32 s16, s16, 1")
    first = 0; prev = None
    for j, (st, ln, n, q0) in enumerate(jobs):
        if (st, ln) == prev: continue
        prev = (st, ln); ent = (U - (n - 1) % U) % U
        if j == 0:
            e(f"s_mov_b32 s18, {st}\ns_mov_b32 s19, {ln}\ns_mov_b32 s20, {n}\ns_mov_b32 s21, s16\ns_mov_b32 s22, {ent}")
        else:
            e(f"s_sub_u32 s24, s16, {j}\ns_cmp_ge_u32 s16, {j}")
            e(f"s_cselect_b32 s18, {st}, s18\ns_cselect_b32 s19, {ln}, s19\ns_cselect_b32 s20, {n}, s20\ns_cselect_b32 s21, s24, s21\ns_cselect_b32 s22, {ent}, s22")
    e("s_lshl_b32 s21, s21, 7")
    e("s_lshl_b32 s24, s15, 1\ns_add_u32 s24, s24, s17\ns_lshl_b32 s24, s24, 8")
    e("s_lshl_b32 s25, s18, 12\ns_add_u32 s25, s25, s24")
    e("s_sub_u32 s26, s19, 1\ns_lshl_b32 s26, s26, 12\ns_add_u32 s26, s26, 256")
    e("s_sub_u32 s27, s20, 1\ns_lshl_b32 s28, s27, 5\ns_sub_u32 s23, s19, s28\ns_lshl_b32 s28, s28, 12")
    e(f"s_cmp_gt_u32 s27, {U}\ns_cselect_b32 s27, 1, 0")
    e(f"s_add_u32 s29, s22, {U-1}\ns_cmp_ge_u32 s29, {U}\ns_cselect_b32 s30, {U}, 0\ns_sub_u32 s29, s29, s30")
    e(f"v_lshrrev_b32 v1, 2, v0\nv_and_b32 v1, 3, v1\nv_lshlrev_b32 v1, 12, v1\nv_lshrrev_b32 v2, 4, v0\nv_lshlrev_b32 v2, 6, v2\nv_and_b32 v3, 3, v0\nv_lshlrev_b32 v3, 4, v3")
    e(f"v_add3_u32 v{vG}, v1, v2, v3")
    e("s_cmp_lt_u32 s14, 4\ns_cbranch_scc1 L_compute")
    i_common = len(L)
    e("s_sub_u32 s14, s14, 4")
    e(f"s_lshl_b32 s31, s14, 15\nv_add_u32 v5, s31, v{vG}")
    e(f"v_add_u32 v6, {16384-1040}, v5\nv_add_u32 v7, {16384-1024}, v5")
    e(f"s_mul_i32 s48, s14, 2080\ns_mul_i32 s49, s29, {KST}\ns_add_u32 s49, s49, s48")
    e(f"s_mul_i32 s50, s22, {KST}\ns_add_u32 s50, s50, s48\ns_add_u32 s51, s48, {U*KST}")
    e(f"s_lshl_b32 s52, s14, 11\ns_add_u32 s52, s52, {VBASE}\ns_lshl_b32 s53, s22, 13\ns_add_u32 s53, s53, s52\ns_add_u32 s54, s52, {U*VST}")
    e("s_mov_b32 m0, s49")
    e("s_mov_b32 s38, s26\ns_mov_b32 s39, 0x00020000\ns_mov_b32 s42, s26\ns_mov_b32 s43, 0x00020000")
    e("s_mov_b32 s55, 0\ns_mov_b32 s56, s28")
    e("s_waitcnt lgkmcnt(0)")
    e("s_add_u32 s36, s6, s25\ns_addc_u32 s37, s7, 0")
    e("buffer_load_dwordx4 v5, s[36:39], s28 offen lds\nbuffer_load_dwordx4 v6, s[36:39], s28 offen offset:1040 lds")
    e("s_add_u32 s40, s8, s25\ns_addc_u32 s41, s9, 0")
    def grp(first=False, konly=True):
        if konly:
            e("s_mov_b32 m0, s50")
            e(f"s_add_u32 s50, s50, {KST}\ns_cmp_eq_u32 s50, s51\ns_cselect_b32 s50, s48, s50")
            e("buffer_load_dwordx4 v5, s[36:39], s55 offen lds\nbuffer_load_dwordx4 v6, s[36:39], s55 offen offset:1040 lds")
        e("s_mov_b32 m0, s53")
        e(f"s_add_u32 s53, s53, {VST}\ns_cmp_eq_u32 s53, s54\ns_cselect_b32 s53, s52, s53")
        e("buffer_load_dwordx4 v5, s[40:43], s56 offen lds\nbuffer_load_dwordx4 v7, s[40:43], s56 offen offset:1024 lds")
        e("s_mov_b32 s56, s55\ns_add_u32 s55, s55, 0x20000")
    grp(); grp(); grp()
    e("s_waitcnt vmcnt(12)\ns_barrier")
    e("s_sub_u32 s57, s20, 5")
    e("L_ld_loop:")
    grp()
    e("s_waitcnt vmcnt(12)\ns_barrier")
    e("s_sub_u32 s57, s57, 1\ns_cbranch_scc0 L_ld_loop")
    grp(konly=False)
    e("s_waitcnt vmcnt(10)\ns_barrier\ns_waitcnt vmcnt(6)\ns_barrier\ns_waitcnt vmcnt(2)\ns_barrier\ns_waitcnt vmcnt(0)\ns_barrier")
    e("s_endpgm")
    paths["loader"] = L[i_start:]
    i_c = len(L)
    e("L_compute:")
    if prio: e(f"s_setprio {prio}")
    e("s_lshl_b32 s31, s14, 5\ns_add_u32 s31, s31, s21\ns_lshl_b32 s31, s31, 12")
    e(f"s_mul_i32 s48, s14, {KST}\ns_add_u32 s48, s48, {QBASE}")
    e("s_mov_b32 s34, s26\ns_mov_b32 s35, 0x00020000\ns_mov_b32 s46, s26\ns_mov_b32 s47, 0x00020000\ns_mov_b32 s49, s31")
    e("s_waitcnt lgkmcnt(0)")
    e("s_add_u32 s32, s4, s25\ns_addc_u32 s33, s5, 0")
    for a in range(8):
        e(f"buffer_load_dwordx4 {R(KF+4*a,4)}, v{vG}, s[32:35], s49 offen")
        if a < 7: e("s_add_u32 s49, s49, 16384")
    stamp(1)
    e("s_add_u32 s44, s10, s25\ns_addc_u32 s45, s11, 0")
    e("s_add_u32 s36, s6, s25\ns_addc_u32 s37, s7, 0\ns_mov_b32 s38, s26\ns_mov_b32 s39, 0x00020000")
    e("s_add_u32 s40, s8, s25\ns_addc_u32 s41, s9, 0\ns_mov_b32 s42, s26\ns_mov_b32 s43, 0x00020000")
    e(f"v_lshlrev_b32 v{vQw}, 4, v0\nv_add_u32 v{vQw}, s48, v{vQw}")
    e(f"v_and_b32 v{vT0}, 31, v0\nv_lshrrev_b32 v{vT1}, 5, v0")
    e(f"v_lshlrev_b32 v{vOut}, 12, v{vT0}\nv_lshl_add_u32 v{vOut}, v{vT1}, 4, v{vOut}")
    e(f"v_lshrrev_b32 v{vT2}, 2, v{vT0}\nv_mul_u32_u24 v{vK}, 1040, v{vT2}\nv_and_b32 v{vT2}, 3, v0")
    e(f"v_lshl_add_u32 v{vK}, v{vT2}, 6, v{vK}\nv_lshl_add_u32 v{vK}, v{vT1}, 4, v{vK}")
    e(f"v_add_u32 v{vQ}, s48, v{vK}")
    e(f"v_lshlrev_b32 v{vV}, 10, v{vT1}\nv_lshl_add_u32 v{vV}, v{vT2}, 3, v{vV}\nv_bfe_u32 v{vT2}, v0, 2, 2\nv_lshl_add_u32 v{vV}, v{vT2}, 6, v{vV}")
    e(f"v_bfe_u32 v{vT2}, v0, 4, 1\nv_lshl_add_u32 v{vV}, v{vT2}, 5, v{vV}\nv_add_u32 v{vV}, {VBASE}, v{vV}")
    e(f"s_mul_i32 s50, s29, {KST}\nv_add_u32 v{vT3}, s50, v{vK}")
    def mask(dst, srem):
        e(f"v_lshlrev_b32 v{vT2}, 2, v{vT1}\nv_sub_u32 v{vT2}, {srem}, v{vT2}\nv_mov_b32 v{vT0}, 0xff800000")
        for r in range(16):
            e(f"v_cmp_lt_i32 vcc, {8*(r>>2)+(r&3)}, v{vT2}\ns_nop 1\nv_cndmask_b32 v{dst+r}, v{vT0}, 0, vcc")
    mask(S[0], "s23")
    for r in range(16): e(f"v_mov_b32 v{S[1]+r}, v{S[0]+r}")
    for r in range(64): e(f"v_mov_b32 v{O+r}, 0")
    for r in range(16): e(f"v_mov_b32 v{VF1+r}, 0")
    for r in range(4): e(f"v_mov_b32 v{P+4+r}, 0")
    e(f"v_mov_b32 v{vL}, 0\ns_mov_b32 s52, 0x{C_SCALE:08x}\ns_mov_b32 s53, s52\ns_mov_b32 s58, 0")
    for a in range(8):
        e(f"s_waitcnt vmcnt({7-a})")
        for j in range(4):
            x = KF + 4 * a + j
            e(f"v_lshlrev_b32 v{TMP+2*j}, 16, v{x}\nv_and_b32 v{TMP+2*j+1}, 0xffff0000, v{x}")
        for j in range(4): e(f"v_pk_mul_f32 {R(TMP+2*j,2)}, {R(TMP+2*j,2)}, s[52:53]")
        for j in range(4): e(f"v_cvt_pk_bf16_f32 v{KF+4*a+j}, v{TMP+2*j}, v{TMP+2*j+1}")
        e(f"ds_write_b128 v{vQw}, {R(KF+4*a,4)} offset:{a*1040}")
    stamp(2)
    e("s_waitcnt lgkmcnt(0)")
    def koff(s): return (s >> 1) * 256 + (s & 1) * 32
    for s in range(8): e(f"ds_read_b128 {R(QF+4*s,4)}, v{vQ} offset:{koff(s)}")
    e("s_barrier")
    stamp(3)
    for s in range(8): e(f"ds_read_b128 {R(KF+4*s,4)}, v{vT3} offset:{koff(s)}")
    e("s_bitcmp1_b32 s22, 0\ns_cbranch_scc1 L_pro1")
    i_pro = len(L)
    pro = {}
    for par in (0, 1):
        i0 = len(L)
        if par: e("L_pro1:")
        for s in range(8):
            if s % 2 == 0: e(f"s_waitcnt lgkmcnt({6-s})")
            e(f"{MF} {R(S[par],16)}, {R(KF+4*s,4)}, {R(QF+4*s,4)}, {R(S[par],16)}")
        e("s_nop 7\ns_nop 3")
        e(f"v_exp_f32 v{S[par]}, v{S[par]}\nv_exp_f32 v{S[par]+1}, v{S[par]+1}")
        e("s_barrier")
        e(f"v_add_f32 v{vL}, v{vL}, v{S[par]}")
        stamp(4)
        ents = [x for x in range(U) if x % 2 == par]
        for x in ents[:-1]: e(f"s_cmp_eq_u32 s22, {x}\ns_cbranch_scc1 L_body{x}")
        if par == 0: e(f"s_branch L_body{ents[-1]}")
        else: e(f"s_branch L_body{ents[-1]}")
        pro[par] = L[i0:]
    def voff(slot, m, jj, dt): return slot * VST + (4 * m + 2 * jj) * 1024 + dt * 256
    def vread(slot, m, dt):
        b = (VF0, VF1)[m] + 4 * dt
        return [f"ds_read_b64_tr_b16 {R(b+2*jj,2)}, v{vV} offset:{voff(slot,m,jj,dt)}" for jj in (0, 1)]
    def pv(m, dt): return f"{MF} {R(O+16*dt,16)}, {R((VF0,VF1)[m]+4*dt,4)}, {R(P+4*m,4)}, {R(O+16*dt,16)}"
    def ex(b, r): return f"v_exp_f32 v{b+r}, v{b+r}"
    def ad(b, r): return f"v_add_f32 v{vL}, v{vL}, v{b+r}"
    def cv(b, k): return f"v_cvt_pk_bf16_f32 v{P+k}, v{b+2*k}, v{b+2*k+1}"
    bodies = []
    for j in range(U):
        i0 = len(L)
        cur, nxt = S[j & 1], S[(j + 1) & 1]
        e(f"L_body{j}:")
        for g in range(16):
            if g < 4: e(pv(1, g))
            elif g < 12:
                s = g - 4
                e(f"{MF} {R(nxt,16)}, {R(KF+4*s,4)}, {R(QF+4*s,4)}, " + ("0" if s == 0 else R(nxt, 16)))
            else: e(pv(0, g - 12))
            if g < 4:
                for s in (2 * g, 2 * g + 1): e(f"ds_read_b128 {R(KF+4*s,4)}, v{vK} offset:{j*KST+koff(s)}")
            elif g < 12:
                for x in vread(j, (g - 4) >> 2, (g - 4) & 3): e(x)
            e(ad(cur, g + 1) if g < 15 else ad(nxt, 0))
            if g % 2 == 0: e(cv(cur, g // 2))
            e(ex(cur, g + 2) if g < 14 else ex(nxt, g - 14))
            if g == 3: e("s_waitcnt lgkmcnt(4)")
            if g in (7, 11): e("s_waitcnt lgkmcnt(8)")
            if g == 13 and j == U - 1: e("s_sub_u32 s27, s27, 1")
            if g == 15: e("s_waitcnt lgkmcnt(0)\ns_barrier")
        if j == U - 1: e("s_cbranch_scc0 L_body0")
        bodies.append(L[i0:])
    i0 = len(L)
    stamp(5)
    cur = S[0]
    vr = vread(0, 0, 0) + vread(0, 0, 1) + vread(0, 0, 2) + vread(0, 0, 3)
    vr1 = vread(0, 1, 0) + vread(0, 1, 1) + vread(0, 1, 2) + vread(0, 1, 3)
    e(pv(1, 0)); [e(x) for x in vr[0:4]]; e(cv(cur, 0)); e(ex(cur, 2))
    e(pv(1, 1)); [e(x) for x in vr[4:8]]; e(ex(cur, 3)); e(ad(cur, 1))
    e(pv(1, 2)); e(ex(cur, 4)); e(cv(cur, 1)); e(ex(cur, 5)); e(ad(cur, 2))
    e(pv(1, 3)); e(ex(cur, 6)); e(cv(cur, 2)); e(ex(cur, 7)); [e(x) for x in vr1[0:2]]
    e(cv(cur, 3)); [e(x) for x in vr1[2:4]]; e("s_waitcnt lgkmcnt(4)")
    e(pv(0, 0)); [e(x) for x in vr1[4:8]]; e(ex(cur, 8)); e(ex(cur, 9))
    e(pv(0, 1)); e(ex(cur, 10)); e(cv(cur, 4)); e(ex(cur, 11)); e(ad(cur, 3))
    e(pv(0, 2)); e(ex(cur, 12)); e(cv(cur, 5)); e(ex(cur, 13)); e(ad(cur, 4))
    e(pv(0, 3)); e(ex(cur, 14)); e(cv(cur, 6)); e(ex(cur, 15)); e(ad(cur, 5))
    e(cv(cur, 7)); e(ad(cur, 6)); e("s_waitcnt lgkmcnt(0)")
    e(pv(1, 0)); [e(ad(cur, r)) for r in range(7, 12)]
    e(pv(1, 1)); [e(ad(cur, r)) for r in range(12, 16)]
    e(f"v_mov_b32 v{vT0}, v{vL}")
    e(pv(1, 2))
    e("s_nop 0")
    e(f"v_permlane32_swap_b32 v{vT0}, v{vL}")
    e(pv(1, 3))
    tail = L[i0:]
    i0 = len(L)
    e("L_epi:")
    e(f"v_add_f32 v{vL}, v{vL}, v{vT0}")
    LO, HI = 0x33800000, 0x4b800000
    e(f"v_subrev_u32 v{vT1}, 0x{LO:08x}, v{vL}\nv_rcp_f32 v{vT0}, v{vL}\nv_cmp_lt_u32 vcc, 0x{HI-LO:08x}, v{vT1}")
    e("s_cbranch_vccnz L_fb")
    e("L_epi2:")
    for dt in range(4):
        for gp in range(2):
            b = O + 16 * dt + 8 * gp
            for k in range(4): e(f"v_pk_mul_f32 {R(b+2*k,2)}, {R(b+2*k,2)}, {R(vT0,2)} op_sel_hi:[1,0]")
            d = KF + 4 * (2 * dt + gp)
            for k in range(4): e(f"v_cvt_pk_bf16_f32 v{d+k}, v{b+2*k}, v{b+2*k+1}")
            e("s_nop 0")
            e(f"v_permlane32_swap_b32 v{d}, v{d+2}\nv_permlane32_swap_b32 v{d+1}, v{d+3}")
            e(f"buffer_store_dwordx4 {R(d,4)}, v{vOut}, s[44:47], s31 offen offset:{dt*64+gp*32} {store_mod}")
    if stamps:
        stamp(6)
        e("s_waitcnt vmcnt(0)")
        stamp(7)
        e("s_memrealtime s[86:87]\ns_waitcnt lgkmcnt(0)")
        e("s_lshl_b32 s55, s2, 2\ns_add_u32 s55, s55, s14\ns_lshl_b32 s55, s55, 6")
        e("s_add_u32 s88, s12, s55\ns_addc_u32 s89, s13, 0\ns_mov_b32 s90, 64\ns_mov_b32 s91, 0x00020000")
        e("v_mov_b32 v4, 0")
        for i, r in enumerate([60, 62, 64, 66, 68, 70, 72, 74, 84, 86, 20, 2]): e(f"v_writelane_b32 v4, s{r}, {i}")
        e("v_lshlrev_b32 v1, 2, v0\nbuffer_store_dword v4, v1, s[88:91], 0 offen")
    e("L_end:\ns_endpgm")
    epi = L[i0:]
    i0 = len(L)
    e("L_fb:")
    e("s_cmp_lg_u32 s58, 0\ns_cbranch_scc1 L_epi2")
    e("s_mov_b32 s58, 1\ns_mov_b32 s55, 0\ns_mov_b32 s56, s19\ns_nop 7")
    for r in range(64): e(f"v_mov_b32 v{O+r}, 0")
    vM = vT3
    e(f"v_mov_b32 v{vL}, 0\nv_mov_b32 v{vM}, 0xff800000\nv_lshrrev_b32 v{vT1}, 5, v0\nv_subrev_u32 v{vV}, {VBASE}, v{vV}\nv_add_u32 v{vV}, s48, v{vV}")
    e("L_fb_loop:")
    e("s_mov_b32 s59, s55\ns_mov_b32 s57, s48")
    for a in range(8):
        e(f"s_mov_b32 m0, s57\ns_add_u32 s57, s57, 1040\nbuffer_load_dwordx4 v{vG}, s[36:39], s59 offen lds\ns_add_u32 s59, s59, 16384")
    mask(S[0], "s56")
    e("s_waitcnt vmcnt(0)")
    for s in range(8): e(f"ds_read_b128 {R(KF+4*s,4)}, v{vQ} offset:{koff(s)}")
    e("s_waitcnt lgkmcnt(0)")
    e("s_mov_b32 s59, s55\ns_mov_b32 s57, s48")
    for a in range(8):
        e(f"s_mov_b32 m0, s57\ns_add_u32 s57, s57, 1024\nbuffer_load_dwordx4 v{vG}, s[40:43], s59 offen lds\ns_add_u32 s59, s59, 16384")
    for s in range(8): e(f"{MF} {R(S[0],16)}, {R(KF+4*s,4)}, {R(QF+4*s,4)}, {R(S[0],16)}")
    e("s_nop 7\ns_nop 3")
    e(f"v_max3_f32 v{vT0}, v{S[0]}, v{S[0]+1}, v{vM}")
    for r in range(2, 16, 2): e(f"v_max3_f32 v{vT0}, v{S[0]+r}, v{S[0]+r+1}, v{vT0}")
    e(f"v_mov_b32 v{vT2}, v{vT0}\ns_nop 1\nv_permlane32_swap_b32 v{vT2}, v{vT0}\nv_max_f32 v{vT0}, v{vT2}, v{vT0}")
    e(f"v_sub_f32 v{vT2}, v{vM}, v{vT0}\nv_exp_f32 v{vT2}, v{vT2}\nv_mov_b32 v{vM}, v{vT0}")
    e(f"v_mul_f32 v{vL}, v{vL}, v{vT2}")
    for r in range(64): e(f"v_mul_f32 v{O+r}, v{O+r}, v{vT2}")
    for r in range(16): e(f"v_sub_f32 v{S[0]+r}, v{S[0]+r}, v{vM}")
    for r in range(16): e(ex(S[0], r))
    e("s_nop 0")
    for r in range(16): e(ad(S[0], r))
    for k in range(8): e(cv(S[0], k))
    e("s_waitcnt vmcnt(0)")
    for x in vr + vr1[:7]: e(x)
    e("s_waitcnt lgkmcnt(0)")
    e(vr1[7])
    e("s_waitcnt lgkmcnt(0)")
    for m in (0, 1):
        for dt in range(4): e(pv(m, dt))
    e("s_add_u32 s55, s55, 0x20000\ns_sub_u32 s56, s56, 32\ns_cmp_gt_i32 s56, 0\ns_cbranch_scc1 L_fb_loop")
    e(f"v_mov_b32 v{vT0}, v{vL}\ns_nop 1\nv_permlane32_swap_b32 v{vT0}, v{vL}\ns_nop 7\ns_branch L_epi")
    fb = L[i0:]
    e(f""".section .rodata,"a"
.p2align 6
.amdhsa_kernel {KN}
  .amdhsa_next_free_vgpr 224
  .amdhsa_next_free_sgpr 96
  .amdhsa_accum_offset 224
  .amdhsa_group_segment_fixed_size 0
  .amdhsa_kernarg_size 56
  .amdhsa_user_sgpr_count 2
  .amdhsa_user_sgpr_kernarg_segment_ptr 1
  .amdhsa_system_sgpr_workgroup_id_x 1
.end_amdhsa_kernel""")
    head = L[i_start:i_common] + L[i_c:i_pro]
    allb = sum(bodies, [])
    errs = check(paths["loader"], "loader")
    if not stamps:
        errs += check(head + pro[0] + allb + allb + tail + epi, "even")
        errs += check(head + pro[1] + sum(bodies[1:], []) + allb + tail + epi, "odd")
        fl = fb.index("L_fb_loop:")
        errs += check(tail + epi[:4] + fb + fb[fl:] + epi, "fb")
    for x in sorted(set(errs)): print("HAZARD", x)
    return "\n".join(L) + "\n"

if __name__ == "__main__":
    open("standalone__ragged_sequences_packed_sequences__ragged.s", "w").write(gen())
    open("attn_st.s", "w").write(gen(stamps=True))
```

```python
import sys, struct
from asmlib import check
KN = "standalone__ragged_sequences_packed_sequences__ragged_kernel"
HDR = open("standalone__ragged_sequences_packed_sequences__ragged.s.ref").read().split("; Override launch")[0]
SEG = {0: (0, 369), 1: (369, 213), 2: (582, 283), 3: (865, 335)}
C_SCALE = struct.unpack("<I", struct.pack("<f", (128 ** -0.5) * 1.4426950408889634))[0]
U = 6
KST, VST = 8320, 8192
KBASE, VBASE = 0, U * KST
QBASE = VBASE + U * VST
LDS = QBASE + 4 * KST
vK, vV, vQ, vG, vL, vT0, vT1 = 1, 2, 3, 4, 5, 6, 7
O, S, QF, KF, VF0, VF1, P = 8, (72, 88), 104, 136, 168, 184, 200
vOut, vT2, vT3, vQw = 208, 209, 210, 211
TMP = 212
def R(b, n): return f"v[{b}:{b+n-1}]"
MF = "v_mfma_f32_32x32x16_bf16"

def gen(stamps=False, store_mod="nt", prio=1):
    jobs = []
    for sg in (0, 3, 2, 1):
        st, ln = SEG[sg]; n = (ln + 31) // 32
        for q0 in range(0, n, 4): jobs.append((st, ln, n, q0 * 32))
    NJ = len(jobs); NWG = NJ * 16
    L = []; e = L.append
    paths = {}
    def stamp(i):
        if stamps: e(f"s_memtime s[{60+2*i}:{61+2*i}]")
    e(HDR + f"; @launch grid=({NWG},1,1) block=(512,1,1) lds={LDS}")
    e('.amdgcn_target "amdgcn-amd-amdhsa--gfx950"\n.text')
    e(f".globl {KN}\n.p2align 12\n.type {KN},@function\n{KN}:")
    i_start = len(L)
    stamp(0)
    if stamps: e("s_memrealtime s[84:85]")
    e(f"s_cmp_ge_u32 s2, {NWG}\ns_cbranch_scc1 L_end")
    e("s_load_dwordx4 s[4:7], s[0:1], 0\ns_load_dwordx2 s[8:9], s[0:1], 16\ns_load_dwordx2 s[10:11], s[0:1], 32")
    if stamps: e("s_load_dwordx2 s[12:13], s[0:1], %d" % (40 if stamps == "dbg" else 48))
    e("v_lshrrev_b32 v1, 6, v0\nv_and_b32 v0, 63, v0\nv_readfirstlane_b32 s14, v1")
    e("s_and_b32 s15, s2, 7\ns_lshr_b32 s16, s2, 3\ns_and_b32 s17, s16, 1\ns_lshr_b32 s16, s16, 1")
    first = 0; prev = None
    for j, (st, ln, n, q0) in enumerate(jobs):
        if (st, ln) == prev: continue
        prev = (st, ln); ent = (U - (n - 1) % U) % U
        if j == 0:
            e(f"s_mov_b32 s18, {st}\ns_mov_b32 s19, {ln}\ns_mov_b32 s20, {n}\ns_mov_b32 s21, s16\ns_mov_b32 s22, {ent}")
        else:
            e(f"s_sub_u32 s24, s16, {j}\ns_cmp_ge_u32 s16, {j}")
            e(f"s_cselect_b32 s18, {st}, s18\ns_cselect_b32 s19, {ln}, s19\ns_cselect_b32 s20, {n}, s20\ns_cselect_b32 s21, s24, s21\ns_cselect_b32 s22, {ent}, s22")
    e("s_lshl_b32 s21, s21, 7")
    e("s_lshl_b32 s24, s15, 1\ns_add_u32 s24, s24, s17\ns_lshl_b32 s24, s24, 8")
    e("s_lshl_b32 s25, s18, 12\ns_add_u32 s25, s25, s24")
    e("s_sub_u32 s26, s19, 1\ns_lshl_b32 s26, s26, 12\ns_add_u32 s26, s26, 256")
    e("s_sub_u32 s27, s20, 1\ns_lshl_b32 s28, s27, 5\ns_sub_u32 s23, s19, s28\ns_lshl_b32 s28, s28, 12")
    e(f"s_cmp_gt_u32 s27, {U}\ns_cselect_b32 s27, 1, 0")
    e(f"s_add_u32 s29, s22, {U-1}\ns_cmp_ge_u32 s29, {U}\ns_cselect_b32 s30, {U}, 0\ns_sub_u32 s29, s29, s30")
    e(f"v_lshrrev_b32 v1, 2, v0\nv_and_b32 v1, 3, v1\nv_lshlrev_b32 v1, 12, v1\nv_lshrrev_b32 v2, 4, v0\nv_lshlrev_b32 v2, 6, v2\nv_and_b32 v3, 3, v0\nv_lshlrev_b32 v3, 4, v3")
    e(f"v_add3_u32 v{vG}, v1, v2, v3")
    e("s_cmp_lt_u32 s14, 4\ns_cbranch_scc1 L_compute")
    i_common = len(L)
    e("s_sub_u32 s14, s14, 4")
    e(f"s_lshl_b32 s31, s14, 15\nv_add_u32 v5, s31, v{vG}")
    e(f"v_add_u32 v6, {16384-1040}, v5\nv_add_u32 v7, {16384-1024}, v5")
    e(f"s_mul_i32 s48, s14, 2080\ns_mul_i32 s49, s29, {KST}\ns_add_u32 s49, s49, s48")
    e(f"s_mul_i32 s50, s22, {KST}\ns_add_u32 s50, s50, s48\ns_add_u32 s51, s48, {U*KST}")
    e(f"s_lshl_b32 s52, s14, 11\ns_add_u32 s52, s52, {VBASE}\ns_lshl_b32 s53, s22, 13\ns_add_u32 s53, s53, s52\ns_add_u32 s54, s52, {U*VST}")
    e("s_mov_b32 m0, s49")
    e("s_mov_b32 s38, s26\ns_mov_b32 s39, 0x00020000\ns_mov_b32 s42, s26\ns_mov_b32 s43, 0x00020000")
    e("s_mov_b32 s55, 0\ns_mov_b32 s56, s28")
    e("s_waitcnt lgkmcnt(0)")
    e("s_add_u32 s36, s6, s25\ns_addc_u32 s37, s7, 0")
    e("buffer_load_dwordx4 v5, s[36:39], s28 offen lds\nbuffer_load_dwordx4 v6, s[36:39], s28 offen offset:1040 lds")
    e("s_add_u32 s40, s8, s25\ns_addc_u32 s41, s9, 0")
    def grp(first=False, konly=True):
        if konly:
            e("s_mov_b32 m0, s50")
            e(f"s_add_u32 s50, s50, {KST}\ns_cmp_eq_u32 s50, s51\ns_cselect_b32 s50, s48, s50")
            e("buffer_load_dwordx4 v5, s[36:39], s55 offen lds\nbuffer_load_dwordx4 v6, s[36:39], s55 offen offset:1040 lds")
        e("s_mov_b32 m0, s53")
        e(f"s_add_u32 s53, s53, {VST}\ns_cmp_eq_u32 s53, s54\ns_cselect_b32 s53, s52, s53")
        e("buffer_load_dwordx4 v5, s[40:43], s56 offen lds\nbuffer_load_dwordx4 v7, s[40:43], s56 offen offset:1024 lds")
        e("s_mov_b32 s56, s55\ns_add_u32 s55, s55, 0x20000")
    grp(); grp(); grp()
    e("s_waitcnt vmcnt(12)\ns_barrier")
    e("s_sub_u32 s57, s20, 5")
    e("L_ld_loop:")
    grp()
    e("s_waitcnt vmcnt(12)\ns_barrier")
    e("s_sub_u32 s57, s57, 1\ns_cbranch_scc0 L_ld_loop")
    grp(konly=False)
    e("s_waitcnt vmcnt(10)\ns_barrier\ns_waitcnt vmcnt(6)\ns_barrier\ns_waitcnt vmcnt(2)\ns_barrier\ns_waitcnt vmcnt(0)\ns_barrier")
    e("s_endpgm")
    paths["loader"] = L[i_start:]
    i_c = len(L)
    e("L_compute:")
    if prio: e(f"s_setprio {prio}")
    e("s_lshl_b32 s31, s14, 5\ns_add_u32 s31, s31, s21\ns_lshl_b32 s31, s31, 12")
    e(f"s_mul_i32 s48, s14, {KST}\ns_add_u32 s48, s48, {QBASE}")
    e("s_mov_b32 s34, s26\ns_mov_b32 s35, 0x00020000\ns_mov_b32 s46, s26\ns_mov_b32 s47, 0x00020000\ns_mov_b32 s49, s31")
    e("s_waitcnt lgkmcnt(0)")
    e("s_add_u32 s32, s4, s25\ns_addc_u32 s33, s5, 0")
    for a in range(8):
        e(f"buffer_load_dwordx4 {R(KF+4*a,4)}, v{vG}, s[32:35], s49 offen")
        if a < 7: e("s_add_u32 s49, s49, 16384")
    stamp(1)
    e("s_add_u32 s44, s10, s25\ns_addc_u32 s45, s11, 0")
    e("s_add_u32 s36, s6, s25\ns_addc_u32 s37, s7, 0\ns_mov_b32 s38, s26\ns_mov_b32 s39, 0x00020000")
    e("s_add_u32 s40, s8, s25\ns_addc_u32 s41, s9, 0\ns_mov_b32 s42, s26\ns_mov_b32 s43, 0x00020000")
    e(f"v_lshlrev_b32 v{vQw}, 4, v0\nv_add_u32 v{vQw}, s48, v{vQw}")
    e(f"v_and_b32 v{vT0}, 31, v0\nv_lshrrev_b32 v{vT1}, 5, v0")
    e(f"v_lshlrev_b32 v{vOut}, 12, v{vT0}\nv_lshl_add_u32 v{vOut}, v{vT1}, 4, v{vOut}")
    e(f"v_lshrrev_b32 v{vT2}, 2, v{vT0}\nv_mul_u32_u24 v{vK}, 1040, v{vT2}\nv_and_b32 v{vT2}, 3, v0")
    e(f"v_lshl_add_u32 v{vK}, v{vT2}, 6, v{vK}\nv_lshl_add_u32 v{vK}, v{vT1}, 4, v{vK}")
    e(f"v_add_u32 v{vQ}, s48, v{vK}")
    e(f"v_lshlrev_b32 v{vV}, 10, v{vT1}\nv_lshl_add_u32 v{vV}, v{vT2}, 3, v{vV}\nv_bfe_u32 v{vT2}, v0, 2, 2\nv_lshl_add_u32 v{vV}, v{vT2}, 6, v{vV}")
    e(f"v_bfe_u32 v{vT2}, v0, 4, 1\nv_lshl_add_u32 v{vV}, v{vT2}, 5, v{vV}\nv_add_u32 v{vV}, {VBASE}, v{vV}")
    e(f"s_mul_i32 s50, s29, {KST}\nv_add_u32 v{vT3}, s50, v{vK}")
    def mask(dst, srem):
        e(f"v_lshlrev_b32 v{vT2}, 2, v{vT1}\nv_sub_u32 v{vT2}, {srem}, v{vT2}\nv_mov_b32 v{vT0}, 0xff800000")
        for r in range(16):
            e(f"v_cmp_lt_i32 vcc, {8*(r>>2)+(r&3)}, v{vT2}\ns_nop 1\nv_cndmask_b32 v{dst+r}, v{vT0}, 0, vcc")
    mask(S[0], "s23")
    for r in range(16): e(f"v_mov_b32 v{S[1]+r}, v{S[0]+r}")
    for r in range(64): e(f"v_mov_b32 v{O+r}, 0")
    for r in range(16): e(f"v_mov_b32 v{VF1+r}, 0")
    for r in range(4): e(f"v_mov_b32 v{P+4+r}, 0")
    e(f"v_mov_b32 v{vL}, 0\ns_mov_b32 s52, 0x{C_SCALE:08x}\ns_mov_b32 s53, s52\ns_mov_b32 s58, 0")
    for a in range(8):
        e(f"s_waitcnt vmcnt({7-a})")
        for j in range(4):
            x = KF + 4 * a + j
            e(f"v_lshlrev_b32 v{TMP+2*j}, 16, v{x}\nv_and_b32 v{TMP+2*j+1}, 0xffff0000, v{x}")
        for j in range(4): e(f"v_pk_mul_f32 {R(TMP+2*j,2)}, {R(TMP+2*j,2)}, s[52:53]")
        for j in range(4): e(f"v_cvt_pk_bf16_f32 v{KF+4*a+j}, v{TMP+2*j}, v{TMP+2*j+1}")
        e(f"ds_write_b128 v{vQw}, {R(KF+4*a,4)} offset:{a*1040}")
    stamp(2)
    e("s_waitcnt lgkmcnt(0)")
    def koff(s): return (s >> 1) * 256 + (s & 1) * 32
    for s in range(8): e(f"ds_read_b128 {R(QF+4*s,4)}, v{vQ} offset:{koff(s)}")
    e("s_barrier")
    stamp(3)
    for s in range(8): e(f"ds_read_b128 {R(KF+4*s,4)}, v{vT3} offset:{koff(s)}")
    e("s_bitcmp1_b32 s22, 0\ns_cbranch_scc1 L_pro1")
    i_pro = len(L)
    pro = {}
    for par in (0, 1):
        i0 = len(L)
        if par: e("L_pro1:")
        for s in range(8):
            if s % 2 == 0: e(f"s_waitcnt lgkmcnt({6-s})")
            e(f"{MF} {R(S[par],16)}, {R(KF+4*s,4)}, {R(QF+4*s,4)}, {R(S[par],16)}")
        e("s_nop 7\ns_nop 3")
        e(f"v_exp_f32 v{S[par]}, v{S[par]}\nv_exp_f32 v{S[par]+1}, v{S[par]+1}")
        e("s_barrier")
        e(f"v_add_f32 v{vL}, v{vL}, v{S[par]}")
        stamp(4)
        ents = [x for x in range(U) if x % 2 == par]
        for x in ents[:-1]: e(f"s_cmp_eq_u32 s22, {x}\ns_cbranch_scc1 L_body{x}")
        if par == 0: e(f"s_branch L_body{ents[-1]}")
        else: e(f"s_branch L_body{ents[-1]}")
        pro[par] = L[i0:]
    def voff(slot, m, jj, dt): return slot * VST + (4 * m + 2 * jj) * 1024 + dt * 256
    def vread(slot, m, dt):
        b = (VF0, VF1)[m] + 4 * dt
        return [f"ds_read_b64_tr_b16 {R(b+2*jj,2)}, v{vV} offset:{voff(slot,m,jj,dt)}" for jj in (0, 1)]
    def pv(m, dt): return f"{MF} {R(O+16*dt,16)}, {R((VF0,VF1)[m]+4*dt,4)}, {R(P+4*m,4)}, {R(O+16*dt,16)}"
    def ex(b, r): return f"v_exp_f32 v{b+r}, v{b+r}"
    def ad(b, r): return f"v_add_f32 v{vL}, v{vL}, v{b+r}"
    def cv(b, k): return f"v_cvt_pk_bf16_f32 v{P+k}, v{b+2*k}, v{b+2*k+1}"
    bodies = []
    for j in range(U):
        i0 = len(L)
        cur, nxt = S[j & 1], S[(j + 1) & 1]
        e(f"L_body{j}:")
        for g in range(16):
            if g < 4: e(pv(1, g))
            elif g < 12:
                s = g - 4
                e(f"{MF} {R(nxt,16)}, {R(KF+4*s,4)}, {R(QF+4*s,4)}, " + ("0" if s == 0 else R(nxt, 16)))
            else: e(pv(0, g - 12))
            if g < 4:
                for s in (2 * g, 2 * g + 1): e(f"ds_read_b128 {R(KF+4*s,4)}, v{vK} offset:{j*KST+koff(s)}")
            elif g < 12:
                for x in vread(j, (g - 4) >> 2, (g - 4) & 3): e(x)
            e(ad(cur, g + 1) if g < 15 else ad(nxt, 0))
            if g % 2 == 0: e(cv(cur, g // 2))
            e(ex(cur, g + 2) if g < 14 else ex(nxt, g - 14))
            if g == 3: e("s_waitcnt lgkmcnt(4)")
            if g in (7, 11): e("s_waitcnt lgkmcnt(8)")
            if g == 13 and j == U - 1: e("s_sub_u32 s27, s27, 1")
            if g == 15: e("s_waitcnt lgkmcnt(0)\ns_barrier")
        if j == U - 1: e("s_cbranch_scc0 L_body0")
        bodies.append(L[i0:])
    i0 = len(L)
    stamp(5)
    cur = S[0]
    vr = vread(0, 0, 0) + vread(0, 0, 1) + vread(0, 0, 2) + vread(0, 0, 3)
    vr1 = vread(0, 1, 0) + vread(0, 1, 1) + vread(0, 1, 2) + vread(0, 1, 3)
    e(pv(1, 0)); [e(x) for x in vr[0:4]]; e(cv(cur, 0)); e(ex(cur, 2))
    e(pv(1, 1)); [e(x) for x in vr[4:8]]; e(ex(cur, 3)); e(ad(cur, 1))
    e(pv(1, 2)); e(ex(cur, 4)); e(cv(cur, 1)); e(ex(cur, 5)); e(ad(cur, 2))
    e(pv(1, 3)); e(ex(cur, 6)); e(cv(cur, 2)); e(ex(cur, 7)); [e(x) for x in vr1[0:2]]
    e(cv(cur, 3)); [e(x) for x in vr1[2:4]]; e("s_waitcnt lgkmcnt(4)")
    e(pv(0, 0)); [e(x) for x in vr1[4:8]]; e(ex(cur, 8)); e(ex(cur, 9))
    e(pv(0, 1)); e(ex(cur, 10)); e(cv(cur, 4)); e(ex(cur, 11)); e(ad(cur, 3))
    e(pv(0, 2)); e(ex(cur, 12)); e(cv(cur, 5)); e(ex(cur, 13)); e(ad(cur, 4))
    e(pv(0, 3)); e(ex(cur, 14)); e(cv(cur, 6)); e(ex(cur, 15)); e(ad(cur, 5))
    e(cv(cur, 7)); e(ad(cur, 6)); e("s_waitcnt lgkmcnt(0)")
    e(pv(1, 0)); [e(ad(cur, r)) for r in range(7, 12)]
    e(pv(1, 1)); [e(ad(cur, r)) for r in range(12, 16)]
    e(f"v_mov_b32 v{vT0}, v{vL}")
    e(pv(1, 2))
    e("s_nop 0")
    e(f"v_permlane32_swap_b32 v{vT0}, v{vL}")
    e(pv(1, 3))
    tail = L[i0:]
    i0 = len(L)
    e("L_epi:")
    e(f"v_add_f32 v{vL}, v{vL}, v{vT0}")
    LO, HI = 0x33800000, 0x4b800000
    e(f"v_subrev_u32 v{vT1}, 0x{LO:08x}, v{vL}\nv_rcp_f32 v{vT0}, v{vL}\nv_cmp_lt_u32 vcc, 0x{HI-LO:08x}, v{vT1}")
    e("s_cbranch_vccnz L_fb")
    e("L_epi2:")
    for dt in range(4):
        for gp in range(2):
            b = O + 16 * dt + 8 * gp
            for k in range(4): e(f"v_pk_mul_f32 {R(b+2*k,2)}, {R(b+2*k,2)}, {R(vT0,2)} op_sel_hi:[1,0]")
            d = KF + 4 * (2 * dt + gp)
            for k in range(4): e(f"v_cvt_pk_bf16_f32 v{d+k}, v{b+2*k}, v{b+2*k+1}")
            e("s_nop 0")
            e(f"v_permlane32_swap_b32 v{d}, v{d+2}\nv_permlane32_swap_b32 v{d+1}, v{d+3}")
            e(f"buffer_store_dwordx4 {R(d,4)}, v{vOut}, s[44:47], s31 offen offset:{dt*64+gp*32} {store_mod}")
    if stamps:
        stamp(6)
        e("s_waitcnt vmcnt(0)")
        stamp(7)
        e("s_memrealtime s[86:87]\ns_waitcnt lgkmcnt(0)")
        e("s_lshl_b32 s55, s2, 2\ns_add_u32 s55, s55, s14\ns_lshl_b32 s55, s55, 6")
        if stamps == "dbg":
            e("s_mov_b32 s55, 0\ns_not_b32 s84, s84")
            for i in range(1, 8): e(f"s_sub_u32 s{60+2*i}, s{60+2*i}, s60")
            e("s_mov_b32 s60, 0")
        e("s_add_u32 s88, s12, s55\ns_addc_u32 s89, s13, 0\ns_mov_b32 s90, 64\ns_mov_b32 s91, 0x00020000")
        e("v_mov_b32 v4, 0")
        for i, r in enumerate([60, 62, 64, 66, 68, 70, 72, 74, 84, 86, 20, 2]): e(f"v_writelane_b32 v4, s{r}, {i}")
        e("v_lshlrev_b32 v1, 2, v0\n" + ("buffer_atomic_umax" if stamps == "dbg" else "buffer_store_dword") + " v4, v1, s[88:91], 0 offen")
    e("L_end:\ns_endpgm")
    epi = L[i0:]
    i0 = len(L)
    e("L_fb:")
    e("s_cmp_lg_u32 s58, 0\ns_cbranch_scc1 L_epi2")
    e("s_mov_b32 s58, 1\ns_mov_b32 s55, 0\ns_mov_b32 s56, s19\ns_nop 7")
    for r in range(64): e(f"v_mov_b32 v{O+r}, 0")
    vM = vT3
    e(f"v_mov_b32 v{vL}, 0\nv_mov_b32 v{vM}, 0xff800000\nv_lshrrev_b32 v{vT1}, 5, v0\nv_subrev_u32 v{vV}, {VBASE}, v{vV}\nv_add_u32 v{vV}, s48, v{vV}")
    e("L_fb_loop:")
    e("s_mov_b32 s59, s55\ns_mov_b32 s57, s48")
    for a in range(8):
        e(f"s_mov_b32 m0, s57\ns_add_u32 s57, s57, 1040\nbuffer_load_dwordx4 v{vG}, s[36:39], s59 offen lds\ns_add_u32 s59, s59, 16384")
    mask(S[0], "s56")
    e("s_waitcnt vmcnt(0)")
    for s in range(8): e(f"ds_read_b128 {R(KF+4*s,4)}, v{vQ} offset:{koff(s)}")
    e("s_waitcnt lgkmcnt(0)")
    e("s_mov_b32 s59, s55\ns_mov_b32 s57, s48")
    for a in range(8):
        e(f"s_mov_b32 m0, s57\ns_add_u32 s57, s57, 1024\nbuffer_load_dwordx4 v{vG}, s[40:43], s59 offen lds\ns_add_u32 s59, s59, 16384")
    for s in range(8): e(f"{MF} {R(S[0],16)}, {R(KF+4*s,4)}, {R(QF+4*s,4)}, {R(S[0],16)}")
    e("s_nop 7\ns_nop 3")
    e(f"v_max3_f32 v{vT0}, v{S[0]}, v{S[0]+1}, v{vM}")
    for r in range(2, 16, 2): e(f"v_max3_f32 v{vT0}, v{S[0]+r}, v{S[0]+r+1}, v{vT0}")
    e(f"v_mov_b32 v{vT2}, v{vT0}\ns_nop 1\nv_permlane32_swap_b32 v{vT2}, v{vT0}\nv_max_f32 v{vT0}, v{vT2}, v{vT0}")
    e(f"v_sub_f32 v{vT2}, v{vM}, v{vT0}\nv_exp_f32 v{vT2}, v{vT2}\nv_mov_b32 v{vM}, v{vT0}")
    e(f"v_mul_f32 v{vL}, v{vL}, v{vT2}")
    for r in range(64): e(f"v_mul_f32 v{O+r}, v{O+r}, v{vT2}")
    for r in range(16): e(f"v_sub_f32 v{S[0]+r}, v{S[0]+r}, v{vM}")
    for r in range(16): e(ex(S[0], r))
    e("s_nop 0")
    for r in range(16): e(ad(S[0], r))
    for k in range(8): e(cv(S[0], k))
    e("s_waitcnt vmcnt(0)")
    for x in vr + vr1[:7]: e(x)
    e("s_waitcnt lgkmcnt(0)")
    e(vr1[7])
    e("s_waitcnt lgkmcnt(0)")
    for m in (0, 1):
        for dt in range(4): e(pv(m, dt))
    e("s_add_u32 s55, s55, 0x20000\ns_sub_u32 s56, s56, 32\ns_cmp_gt_i32 s56, 0\ns_cbranch_scc1 L_fb_loop")
    e(f"v_mov_b32 v{vT0}, v{vL}\ns_nop 1\nv_permlane32_swap_b32 v{vT0}, v{vL}\ns_nop 7\ns_branch L_epi")
    fb = L[i0:]
    e(f""".section .rodata,"a"
.p2align 6
.amdhsa_kernel {KN}
  .amdhsa_next_free_vgpr 224
  .amdhsa_next_free_sgpr 96
  .amdhsa_accum_offset 224
  .amdhsa_group_segment_fixed_size 0
  .amdhsa_kernarg_size 56
  .amdhsa_user_sgpr_count 2
  .amdhsa_user_sgpr_kernarg_segment_ptr 1
  .amdhsa_system_sgpr_workgroup_id_x 1
.end_amdhsa_kernel""")
    head = L[i_start:i_common] + L[i_c:i_pro]
    allb = sum(bodies, [])
    errs = check(paths["loader"], "loader")
    if not stamps:
        errs += check(head + pro[0] + allb + allb + tail + epi, "even")
        errs += check(head + pro[1] + sum(bodies[1:], []) + allb + tail + epi, "odd")
        fl = fb.index("L_fb_loop:")
        errs += check(tail + epi[:4] + fb + fb[fl:] + epi, "fb")
    for x in sorted(set(errs)): print("HAZARD", x)
    return "\n".join(L) + "\n"

if __name__ == "__main__":
    open("standalone__ragged_sequences_packed_sequences__ragged.s", "w").write(gen())
    open("attn_st.s", "w").write(gen(stamps=True))
    open("attn_dbg.s", "w").write(gen(stamps="dbg"))
```

```python
import sys, struct
from asmlib import check
KN = "standalone__ragged_sequences_packed_sequences__ragged_kernel"
HDR = open("standalone__ragged_sequences_packed_sequences__ragged.s.ref").read().split("; Override launch")[0]
SEG = {0: (0, 369), 1: (369, 213), 2: (582, 283), 3: (865, 335)}
C_SCALE = struct.unpack("<I", struct.pack("<f", (128 ** -0.5) * 1.4426950408889634))[0]
U = 6
KST, VST = 8320, 8192
KBASE, VBASE = 0, U * KST
QBASE = VBASE + U * VST
LDS = QBASE + 4 * KST
vK, vV, vQ, vG, vL, vT0, vT1 = 1, 2, 3, 4, 5, 6, 7
O, S, QF, KF, VF0, VF1, P = 8, (72, 88), 104, 136, 168, 184, 200
vOut, vT2, vT3, vQw = 208, 209, 210, 211
TMP = 212
def R(b, n): return f"v[{b}:{b+n-1}]"
MF = "v_mfma_f32_32x32x16_bf16"

def gen(stamps=False, store_mod="nt", prio=1, spin=0):
    jobs = []
    for sg in (0, 3, 2, 1):
        st, ln = SEG[sg]; n = (ln + 31) // 32
        for q0 in range(0, n, 4): jobs.append((st, ln, n, q0 * 32))
    NJ = len(jobs); NWG = NJ * 16
    L = []; e = L.append
    paths = {}
    def stamp(i):
        if stamps: e(f"s_memtime s[{60+2*i}:{61+2*i}]")
    e(HDR + f"; @launch grid=({NWG},1,1) block=(512,1,1) lds={LDS}")
    e('.amdgcn_target "amdgcn-amd-amdhsa--gfx950"\n.text')
    e(f".globl {KN}\n.p2align 12\n.type {KN},@function\n{KN}:")
    i_start = len(L)
    stamp(0)
    if stamps or spin: e("s_memrealtime s[84:85]")
    e(f"s_cmp_ge_u32 s2, {NWG}\ns_cbranch_scc1 L_end")
    e("s_load_dwordx4 s[4:7], s[0:1], 0\ns_load_dwordx2 s[8:9], s[0:1], 16\ns_load_dwordx2 s[10:11], s[0:1], 32")
    if stamps: e("s_load_dwordx2 s[12:13], s[0:1], %d" % (40 if stamps == "dbg" else 48))
    e("v_lshrrev_b32 v1, 6, v0\nv_and_b32 v0, 63, v0\nv_readfirstlane_b32 s14, v1")
    e("s_and_b32 s15, s2, 7\ns_lshr_b32 s16, s2, 3\ns_and_b32 s17, s16, 1\ns_lshr_b32 s16, s16, 1")
    first = 0; prev = None
    for j, (st, ln, n, q0) in enumerate(jobs):
        if (st, ln) == prev: continue
        prev = (st, ln); ent = (U - (n - 1) % U) % U
        if j == 0:
            e(f"s_mov_b32 s18, {st}\ns_mov_b32 s19, {ln}\ns_mov_b32 s20, {n}\ns_mov_b32 s21, s16\ns_mov_b32 s22, {ent}")
        else:
            e(f"s_sub_u32 s24, s16, {j}\ns_cmp_ge_u32 s16, {j}")
            e(f"s_cselect_b32 s18, {st}, s18\ns_cselect_b32 s19, {ln}, s19\ns_cselect_b32 s20, {n}, s20\ns_cselect_b32 s21, s24, s21\ns_cselect_b32 s22, {ent}, s22")
    e("s_lshl_b32 s21, s21, 7")
    e("s_lshl_b32 s24, s15, 1\ns_add_u32 s24, s24, s17\ns_lshl_b32 s24, s24, 8")
    e("s_lshl_b32 s25, s18, 12\ns_add_u32 s25, s25, s24")
    e("s_sub_u32 s26, s19, 1\ns_lshl_b32 s26, s26, 12\ns_add_u32 s26, s26, 256")
    e("s_sub_u32 s27, s20, 1\ns_lshl_b32 s28, s27, 5\ns_sub_u32 s23, s19, s28\ns_lshl_b32 s28, s28, 12")
    e(f"s_cmp_gt_u32 s27, {U}\ns_cselect_b32 s27, 1, 0")
    e(f"s_add_u32 s29, s22, {U-1}\ns_cmp_ge_u32 s29, {U}\ns_cselect_b32 s30, {U}, 0\ns_sub_u32 s29, s29, s30")
    e(f"v_lshrrev_b32 v1, 2, v0\nv_and_b32 v1, 3, v1\nv_lshlrev_b32 v1, 12, v1\nv_lshrrev_b32 v2, 4, v0\nv_lshlrev_b32 v2, 6, v2\nv_and_b32 v3, 3, v0\nv_lshlrev_b32 v3, 4, v3")
    e(f"v_add3_u32 v{vG}, v1, v2, v3")
    e("s_cmp_lt_u32 s14, 4\ns_cbranch_scc1 L_compute")
    i_common = len(L)
    e("s_sub_u32 s14, s14, 4")
    e(f"s_lshl_b32 s31, s14, 15\nv_add_u32 v5, s31, v{vG}")
    e(f"v_add_u32 v6, {16384-1040}, v5\nv_add_u32 v7, {16384-1024}, v5")
    e(f"s_mul_i32 s48, s14, 2080\ns_mul_i32 s49, s29, {KST}\ns_add_u32 s49, s49, s48")
    e(f"s_mul_i32 s50, s22, {KST}\ns_add_u32 s50, s50, s48\ns_add_u32 s51, s48, {U*KST}")
    e(f"s_lshl_b32 s52, s14, 11\ns_add_u32 s52, s52, {VBASE}\ns_lshl_b32 s53, s22, 13\ns_add_u32 s53, s53, s52\ns_add_u32 s54, s52, {U*VST}")
    e("s_mov_b32 m0, s49")
    e("s_mov_b32 s38, s26\ns_mov_b32 s39, 0x00020000\ns_mov_b32 s42, s26\ns_mov_b32 s43, 0x00020000")
    e("s_mov_b32 s55, 0\ns_mov_b32 s56, s28")
    e("s_waitcnt lgkmcnt(0)")
    e("s_add_u32 s36, s6, s25\ns_addc_u32 s37, s7, 0")
    e("buffer_load_dwordx4 v5, s[36:39], s28 offen lds\nbuffer_load_dwordx4 v6, s[36:39], s28 offen offset:1040 lds")
    e("s_add_u32 s40, s8, s25\ns_addc_u32 s41, s9, 0")
    def grp(first=False, konly=True):
        if konly:
            e("s_mov_b32 m0, s50")
            e(f"s_add_u32 s50, s50, {KST}\ns_cmp_eq_u32 s50, s51\ns_cselect_b32 s50, s48, s50")
            e("buffer_load_dwordx4 v5, s[36:39], s55 offen lds\nbuffer_load_dwordx4 v6, s[36:39], s55 offen offset:1040 lds")
        e("s_mov_b32 m0, s53")
        e(f"s_add_u32 s53, s53, {VST}\ns_cmp_eq_u32 s53, s54\ns_cselect_b32 s53, s52, s53")
        e("buffer_load_dwordx4 v5, s[40:43], s56 offen lds\nbuffer_load_dwordx4 v7, s[40:43], s56 offen offset:1024 lds")
        e("s_mov_b32 s56, s55\ns_add_u32 s55, s55, 0x20000")
    grp(); grp(); grp()
    e("s_waitcnt vmcnt(12)\ns_barrier")
    e("s_sub_u32 s57, s20, 5")
    e("L_ld_loop:")
    grp()
    e("s_waitcnt vmcnt(12)\ns_barrier")
    e("s_sub_u32 s57, s57, 1\ns_cbranch_scc0 L_ld_loop")
    grp(konly=False)
    e("s_waitcnt vmcnt(10)\ns_barrier\ns_waitcnt vmcnt(6)\ns_barrier\ns_waitcnt vmcnt(2)\ns_barrier\ns_waitcnt vmcnt(0)\ns_barrier")
    e("s_endpgm")
    paths["loader"] = L[i_start:]
    i_c = len(L)
    e("L_compute:")
    if prio: e(f"s_setprio {prio}")
    e("s_lshl_b32 s31, s14, 5\ns_add_u32 s31, s31, s21\ns_lshl_b32 s31, s31, 12")
    e(f"s_mul_i32 s48, s14, {KST}\ns_add_u32 s48, s48, {QBASE}")
    e("s_mov_b32 s34, s26\ns_mov_b32 s35, 0x00020000\ns_mov_b32 s46, s26\ns_mov_b32 s47, 0x00020000\ns_mov_b32 s49, s31")
    e("s_waitcnt lgkmcnt(0)")
    e("s_add_u32 s32, s4, s25\ns_addc_u32 s33, s5, 0")
    for a in range(8):
        e(f"buffer_load_dwordx4 {R(KF+4*a,4)}, v{vG}, s[32:35], s49 offen")
        if a < 7: e("s_add_u32 s49, s49, 16384")
    stamp(1)
    e("s_add_u32 s44, s10, s25\ns_addc_u32 s45, s11, 0")
    e("s_add_u32 s36, s6, s25\ns_addc_u32 s37, s7, 0\ns_mov_b32 s38, s26\ns_mov_b32 s39, 0x00020000")
    e("s_add_u32 s40, s8, s25\ns_addc_u32 s41, s9, 0\ns_mov_b32 s42, s26\ns_mov_b32 s43, 0x00020000")
    e(f"v_lshlrev_b32 v{vQw}, 4, v0\nv_add_u32 v{vQw}, s48, v{vQw}")
    e(f"v_and_b32 v{vT0}, 31, v0\nv_lshrrev_b32 v{vT1}, 5, v0")
    e(f"v_lshlrev_b32 v{vOut}, 12, v{vT0}\nv_lshl_add_u32 v{vOut}, v{vT1}, 4, v{vOut}")
    e(f"v_lshrrev_b32 v{vT2}, 2, v{vT0}\nv_mul_u32_u24 v{vK}, 1040, v{vT2}\nv_and_b32 v{vT2}, 3, v0")
    e(f"v_lshl_add_u32 v{vK}, v{vT2}, 6, v{vK}\nv_lshl_add_u32 v{vK}, v{vT1}, 4, v{vK}")
    e(f"v_add_u32 v{vQ}, s48, v{vK}")
    e(f"v_lshlrev_b32 v{vV}, 10, v{vT1}\nv_lshl_add_u32 v{vV}, v{vT2}, 3, v{vV}\nv_bfe_u32 v{vT2}, v0, 2, 2\nv_lshl_add_u32 v{vV}, v{vT2}, 6, v{vV}")
    e(f"v_bfe_u32 v{vT2}, v0, 4, 1\nv_lshl_add_u32 v{vV}, v{vT2}, 5, v{vV}\nv_add_u32 v{vV}, {VBASE}, v{vV}")
    e(f"s_mul_i32 s50, s29, {KST}\nv_add_u32 v{vT3}, s50, v{vK}")
    def mask(dst, srem):
        e(f"v_lshlrev_b32 v{vT2}, 2, v{vT1}\nv_sub_u32 v{vT2}, {srem}, v{vT2}\nv_mov_b32 v{vT0}, 0xff800000")
        for r in range(16):
            e(f"v_cmp_lt_i32 vcc, {8*(r>>2)+(r&3)}, v{vT2}\ns_nop 1\nv_cndmask_b32 v{dst+r}, v{vT0}, 0, vcc")
    mask(S[0], "s23")
    for r in range(16): e(f"v_mov_b32 v{S[1]+r}, v{S[0]+r}")
    for r in range(64): e(f"v_mov_b32 v{O+r}, 0")
    for r in range(16): e(f"v_mov_b32 v{VF1+r}, 0")
    for r in range(4): e(f"v_mov_b32 v{P+4+r}, 0")
    e(f"v_mov_b32 v{vL}, 0\ns_mov_b32 s52, 0x{C_SCALE:08x}\ns_mov_b32 s53, s52\ns_mov_b32 s58, 0")
    for a in range(8):
        e(f"s_waitcnt vmcnt({7-a})")
        for j in range(4):
            x = KF + 4 * a + j
            e(f"v_lshlrev_b32 v{TMP+2*j}, 16, v{x}\nv_and_b32 v{TMP+2*j+1}, 0xffff0000, v{x}")
        for j in range(4): e(f"v_pk_mul_f32 {R(TMP+2*j,2)}, {R(TMP+2*j,2)}, s[52:53]")
        for j in range(4): e(f"v_cvt_pk_bf16_f32 v{KF+4*a+j}, v{TMP+2*j}, v{TMP+2*j+1}")
        e(f"ds_write_b128 v{vQw}, {R(KF+4*a,4)} offset:{a*1040}")
    stamp(2)
    e("s_waitcnt lgkmcnt(0)")
    def koff(s): return (s >> 1) * 256 + (s & 1) * 32
    for s in range(8): e(f"ds_read_b128 {R(QF+4*s,4)}, v{vQ} offset:{koff(s)}")
    e("s_barrier")
    stamp(3)
    for s in range(8): e(f"ds_read_b128 {R(KF+4*s,4)}, v{vT3} offset:{koff(s)}")
    e("s_bitcmp1_b32 s22, 0\ns_cbranch_scc1 L_pro1")
    i_pro = len(L)
    pro = {}
    for par in (0, 1):
        i0 = len(L)
        if par: e("L_pro1:")
        for s in range(8):
            if s % 2 == 0: e(f"s_waitcnt lgkmcnt({6-s})")
            e(f"{MF} {R(S[par],16)}, {R(KF+4*s,4)}, {R(QF+4*s,4)}, {R(S[par],16)}")
        e("s_nop 7\ns_nop 3")
        e(f"v_exp_f32 v{S[par]}, v{S[par]}\nv_exp_f32 v{S[par]+1}, v{S[par]+1}")
        e("s_barrier")
        e(f"v_add_f32 v{vL}, v{vL}, v{S[par]}")
        stamp(4)
        ents = [x for x in range(U) if x % 2 == par]
        for x in ents[:-1]: e(f"s_cmp_eq_u32 s22, {x}\ns_cbranch_scc1 L_body{x}")
        if par == 0: e(f"s_branch L_body{ents[-1]}")
        else: e(f"s_branch L_body{ents[-1]}")
        pro[par] = L[i0:]
    def voff(slot, m, jj, dt): return slot * VST + (4 * m + 2 * jj) * 1024 + dt * 256
    def vread(slot, m, dt):
        b = (VF0, VF1)[m] + 4 * dt
        return [f"ds_read_b64_tr_b16 {R(b+2*jj,2)}, v{vV} offset:{voff(slot,m,jj,dt)}" for jj in (0, 1)]
    def pv(m, dt): return f"{MF} {R(O+16*dt,16)}, {R((VF0,VF1)[m]+4*dt,4)}, {R(P+4*m,4)}, {R(O+16*dt,16)}"
    def ex(b, r): return f"v_exp_f32 v{b+r}, v{b+r}"
    def ad(b, r): return f"v_add_f32 v{vL}, v{vL}, v{b+r}"
    def cv(b, k): return f"v_cvt_pk_bf16_f32 v{P+k}, v{b+2*k}, v{b+2*k+1}"
    bodies = []
    for j in range(U):
        i0 = len(L)
        cur, nxt = S[j & 1], S[(j + 1) & 1]
        e(f"L_body{j}:")
        for g in range(16):
            if g < 4: e(pv(1, g))
            elif g < 12:
                s = g - 4
                e(f"{MF} {R(nxt,16)}, {R(KF+4*s,4)}, {R(QF+4*s,4)}, " + ("0" if s == 0 else R(nxt, 16)))
            else: e(pv(0, g - 12))
            if g < 4:
                for s in (2 * g, 2 * g + 1): e(f"ds_read_b128 {R(KF+4*s,4)}, v{vK} offset:{j*KST+koff(s)}")
            elif g < 12:
                for x in vread(j, (g - 4) >> 2, (g - 4) & 3): e(x)
            e(ad(cur, g + 1) if g < 15 else ad(nxt, 0))
            if g % 2 == 0: e(cv(cur, g // 2))
            e(ex(cur, g + 2) if g < 14 else ex(nxt, g - 14))
            if g == 3: e("s_waitcnt lgkmcnt(4)")
            if g in (7, 11): e("s_waitcnt lgkmcnt(8)")
            if g == 13 and j == U - 1: e("s_sub_u32 s27, s27, 1")
            if g == 15: e("s_waitcnt lgkmcnt(0)\ns_barrier")
        if j == U - 1: e("s_cbranch_scc0 L_body0")
        bodies.append(L[i0:])
    i0 = len(L)
    stamp(5)
    cur = S[0]
    vr = vread(0, 0, 0) + vread(0, 0, 1) + vread(0, 0, 2) + vread(0, 0, 3)
    vr1 = vread(0, 1, 0) + vread(0, 1, 1) + vread(0, 1, 2) + vread(0, 1, 3)
    e(pv(1, 0)); [e(x) for x in vr[0:4]]; e(cv(cur, 0)); e(ex(cur, 2))
    e(pv(1, 1)); [e(x) for x in vr[4:8]]; e(ex(cur, 3)); e(ad(cur, 1))
    e(pv(1, 2)); e(ex(cur, 4)); e(cv(cur, 1)); e(ex(cur, 5)); e(ad(cur, 2))
    e(pv(1, 3)); e(ex(cur, 6)); e(cv(cur, 2)); e(ex(cur, 7)); [e(x) for x in vr1[0:2]]
    e(cv(cur, 3)); [e(x) for x in vr1[2:4]]; e("s_waitcnt lgkmcnt(4)")
    e(pv(0, 0)); [e(x) for x in vr1[4:8]]; e(ex(cur, 8)); e(ex(cur, 9))
    e(pv(0, 1)); e(ex(cur, 10)); e(cv(cur, 4)); e(ex(cur, 11)); e(ad(cur, 3))
    e(pv(0, 2)); e(ex(cur, 12)); e(cv(cur, 5)); e(ex(cur, 13)); e(ad(cur, 4))
    e(pv(0, 3)); e(ex(cur, 14)); e(cv(cur, 6)); e(ex(cur, 15)); e(ad(cur, 5))
    e(cv(cur, 7)); e(ad(cur, 6)); e("s_waitcnt lgkmcnt(0)")
    e(pv(1, 0)); [e(ad(cur, r)) for r in range(7, 12)]
    e(pv(1, 1)); [e(ad(cur, r)) for r in range(12, 16)]
    e(f"v_mov_b32 v{vT0}, v{vL}")
    e(pv(1, 2))
    e("s_nop 0")
    e(f"v_permlane32_swap_b32 v{vT0}, v{vL}")
    e(pv(1, 3))
    tail = L[i0:]
    i0 = len(L)
    e("L_epi:")
    e(f"v_add_f32 v{vL}, v{vL}, v{vT0}")
    LO, HI = 0x33800000, 0x4b800000
    e(f"v_subrev_u32 v{vT1}, 0x{LO:08x}, v{vL}\nv_rcp_f32 v{vT0}, v{vL}\nv_cmp_lt_u32 vcc, 0x{HI-LO:08x}, v{vT1}")
    e("s_cbranch_vccnz L_fb")
    e("L_epi2:")
    for dt in range(4):
        for gp in range(2):
            b = O + 16 * dt + 8 * gp
            for k in range(4): e(f"v_pk_mul_f32 {R(b+2*k,2)}, {R(b+2*k,2)}, {R(vT0,2)} op_sel_hi:[1,0]")
            d = KF + 4 * (2 * dt + gp)
            for k in range(4): e(f"v_cvt_pk_bf16_f32 v{d+k}, v{b+2*k}, v{b+2*k+1}")
            e("s_nop 0")
            e(f"v_permlane32_swap_b32 v{d}, v{d+2}\nv_permlane32_swap_b32 v{d+1}, v{d+3}")
            e(f"buffer_store_dwordx4 {R(d,4)}, v{vOut}, s[44:47], s31 offen offset:{dt*64+gp*32} {store_mod}")
    if stamps:
        stamp(6)
        e("s_waitcnt vmcnt(0)")
        stamp(7)
        e("s_memrealtime s[86:87]\ns_waitcnt lgkmcnt(0)")
        e("s_lshl_b32 s55, s2, 2\ns_add_u32 s55, s55, s14\ns_lshl_b32 s55, s55, 6")
        if stamps == "dbg":
            e("s_mov_b32 s55, 0\ns_not_b32 s84, s84")
            for i in range(1, 8): e(f"s_sub_u32 s{60+2*i}, s{60+2*i}, s60")
            e("s_mov_b32 s60, 0")
        e("s_add_u32 s88, s12, s55\ns_addc_u32 s89, s13, 0\ns_mov_b32 s90, 64\ns_mov_b32 s91, 0x00020000")
        e("v_mov_b32 v4, 0")
        for i, r in enumerate([60, 62, 64, 66, 68, 70, 72, 74, 84, 86, 20, 2]): e(f"v_writelane_b32 v4, s{r}, {i}")
        e("v_lshlrev_b32 v1, 2, v0\n" + ("buffer_atomic_umax" if stamps == "dbg" else "buffer_store_dword") + " v4, v1, s[88:91], 0 offen")
    if spin:
        e(f"s_or_b32 s86, s2, s14\ns_cmp_lg_u32 s86, 0\ns_cbranch_scc1 L_end\ns_waitcnt vmcnt(0)\nL_spin:\ns_memrealtime s[86:87]\ns_waitcnt lgkmcnt(0)\ns_sub_u32 s86, s86, s84\ns_cmp_lt_u32 s86, {spin}\ns_cbranch_scc1 L_spin")
    e("L_end:\ns_endpgm")
    epi = L[i0:]
    i0 = len(L)
    e("L_fb:")
    e("s_cmp_lg_u32 s58, 0\ns_cbranch_scc1 L_epi2")
    e("s_mov_b32 s58, 1\ns_mov_b32 s55, 0\ns_mov_b32 s56, s19\ns_nop 7")
    for r in range(64): e(f"v_mov_b32 v{O+r}, 0")
    vM = vT3
    e(f"v_mov_b32 v{vL}, 0\nv_mov_b32 v{vM}, 0xff800000\nv_lshrrev_b32 v{vT1}, 5, v0\nv_subrev_u32 v{vV}, {VBASE}, v{vV}\nv_add_u32 v{vV}, s48, v{vV}")
    e("L_fb_loop:")
    e("s_mov_b32 s59, s55\ns_mov_b32 s57, s48")
    for a in range(8):
        e(f"s_mov_b32 m0, s57\ns_add_u32 s57, s57, 1040\nbuffer_load_dwordx4 v{vG}, s[36:39], s59 offen lds\ns_add_u32 s59, s59, 16384")
    mask(S[0], "s56")
    e("s_waitcnt vmcnt(0)")
    for s in range(8): e(f"ds_read_b128 {R(KF+4*s,4)}, v{vQ} offset:{koff(s)}")
    e("s_waitcnt lgkmcnt(0)")
    e("s_mov_b32 s59, s55\ns_mov_b32 s57, s48")
    for a in range(8):
        e(f"s_mov_b32 m0, s57\ns_add_u32 s57, s57, 1024\nbuffer_load_dwordx4 v{vG}, s[40:43], s59 offen lds\ns_add_u32 s59, s59, 16384")
    for s in range(8): e(f"{MF} {R(S[0],16)}, {R(KF+4*s,4)}, {R(QF+4*s,4)}, {R(S[0],16)}")
    e("s_nop 7\ns_nop 3")
    e(f"v_max3_f32 v{vT0}, v{S[0]}, v{S[0]+1}, v{vM}")
    for r in range(2, 16, 2): e(f"v_max3_f32 v{vT0}, v{S[0]+r}, v{S[0]+r+1}, v{vT0}")
    e(f"v_mov_b32 v{vT2}, v{vT0}\ns_nop 1\nv_permlane32_swap_b32 v{vT2}, v{vT0}\nv_max_f32 v{vT0}, v{vT2}, v{vT0}")
    e(f"v_sub_f32 v{vT2}, v{vM}, v{vT0}\nv_exp_f32 v{vT2}, v{vT2}\nv_mov_b32 v{vM}, v{vT0}")
    e(f"v_mul_f32 v{vL}, v{vL}, v{vT2}")
    for r in range(64): e(f"v_mul_f32 v{O+r}, v{O+r}, v{vT2}")
    for r in range(16): e(f"v_sub_f32 v{S[0]+r}, v{S[0]+r}, v{vM}")
    for r in range(16): e(ex(S[0], r))
    e("s_nop 0")
    for r in range(16): e(ad(S[0], r))
    for k in range(8): e(cv(S[0], k))
    e("s_waitcnt vmcnt(0)")
    for x in vr + vr1[:7]: e(x)
    e("s_waitcnt lgkmcnt(0)")
    e(vr1[7])
    e("s_waitcnt lgkmcnt(0)")
    for m in (0, 1):
        for dt in range(4): e(pv(m, dt))
    e("s_add_u32 s55, s55, 0x20000\ns_sub_u32 s56, s56, 32\ns_cmp_gt_i32 s56, 0\ns_cbranch_scc1 L_fb_loop")
    e(f"v_mov_b32 v{vT0}, v{vL}\ns_nop 1\nv_permlane32_swap_b32 v{vT0}, v{vL}\ns_nop 7\ns_branch L_epi")
    fb = L[i0:]
    e(f""".section .rodata,"a"
.p2align 6
.amdhsa_kernel {KN}
  .amdhsa_next_free_vgpr 224
  .amdhsa_next_free_sgpr 96
  .amdhsa_accum_offset 224
  .amdhsa_group_segment_fixed_size 0
  .amdhsa_kernarg_size 56
  .amdhsa_user_sgpr_count 2
  .amdhsa_user_sgpr_kernarg_segment_ptr 1
  .amdhsa_system_sgpr_workgroup_id_x 1
.end_amdhsa_kernel""")
    head = L[i_start:i_common] + L[i_c:i_pro]
    allb = sum(bodies, [])
    errs = check(paths["loader"], "loader")
    if not stamps:
        errs += check(head + pro[0] + allb + allb + tail + epi, "even")
        errs += check(head + pro[1] + sum(bodies[1:], []) + allb + tail + epi, "odd")
        fl = fb.index("L_fb_loop:")
        errs += check(tail + epi[:4] + fb + fb[fl:] + epi, "fb")
    for x in sorted(set(errs)): print("HAZARD", x)
    return "\n".join(L) + "\n"

if __name__ == "__main__":
    open("standalone__ragged_sequences_packed_sequences__ragged.s", "w").write(gen())
    open("attn_st.s", "w").write(gen(stamps=True))
    open("attn_dbg.s", "w").write(gen(stamps="dbg"))
    for sp in (800, 1000, 1400, 2000): open(f"attn_spin{sp}.s", "w").write(gen(spin=sp))
```

```python
import re
TRANS = ("v_exp_f32", "v_log_f32", "v_rcp_f32", "v_rsq_f32", "v_sqrt_f32", "v_sin_f32", "v_cos_f32")

def regs(tok):
    tok = tok.strip()
    neg = tok.lstrip("-").strip("|")
    m = re.fullmatch(r"([vsa])\[(\d+):(\d+)\]", neg)
    if m: return [(m.group(1), i) for i in range(int(m.group(2)), int(m.group(3)) + 1)]
    m = re.fullmatch(r"([vsa])(\d+)", neg)
    if m: return [(m.group(1), int(m.group(2)))]
    if neg == "vcc": return [("s", "vcc")]
    if neg in ("vcc_lo", "vcc_hi"): return [("s", "vcc")]
    if neg == "m0": return [("s", "m0")]
    if neg == "exec": return [("s", "exec")]
    return []

class Ins:
    def __init__(self, text):
        self.text = text
        t = text.split(";")[0].strip()
        parts = t.split(None, 1)
        self.op = parts[0]
        rest = parts[1] if len(parts) > 1 else ""
        ops = [x.strip() for x in rest.split(",")] if rest else []
        self.mods = ""
        if ops:
            last = ops[-1].split(None, 1)
            ops[-1] = last[0]
            self.mods = last[1] if len(last) > 1 else ""
        self.ops = ops
        op = self.op
        self.kind = ("mfma" if op.startswith("v_mfma") else "valu" if op.startswith("v_") else
                     "ds" if op.startswith("ds_") else "vmem" if op.startswith(("buffer_", "global_")) else "salu")
        R = [regs(o) for o in ops]
        self.defs, self.uses = [], []
        self.srcc = []
        if self.kind == "mfma":
            self.defs = R[0]; self.ab = R[1] + R[2]; self.srcc = R[3]; self.uses = self.ab + self.srcc
            self.passes = 8 if "32x32" in op else 4
        elif self.kind == "valu":
            if op.startswith("v_permlane") and "swap" in op:
                self.defs = R[0] + R[1]; self.uses = R[0] + R[1]
            elif op.startswith("v_cmp"):
                self.defs = R[0]; self.uses = sum(R[1:], [])
            elif op.startswith("v_cndmask") and len(ops) == 3:
                self.defs = R[0]; self.uses = sum(R[1:], []) + [("s", "vcc")]
            elif op.startswith(("v_fmac", "v_writelane", "v_dot2c", "v_mac")):
                self.defs = R[0]; self.uses = sum(R, [])
            else:
                self.defs = R[0]; self.uses = sum(R[1:], [])
        elif self.kind == "ds":
            if "read" in op: self.defs = R[0]; self.uses = sum(R[1:], [])
            else: self.uses = sum(R, [])
        elif self.kind == "vmem":
            if "load" in op and "lds" not in self.mods.split():
                self.defs = R[0]; self.uses = sum(R[1:], [])
            elif "load" in op:
                self.uses = sum(R, []) + [("s", "m0")]
            else:
                self.uses = sum(R, []); self.sdata = R[0]
        else:
            if op.startswith(("s_cmp", "s_waitcnt", "s_nop", "s_barrier", "s_cbranch", "s_branch", "s_endpgm", "s_setprio")):
                self.uses = sum(R, [])
            else:
                self.defs = R[0] if R else []; self.uses = sum(R[1:], [])
        self.states = 1
        if op == "s_nop": self.states = int(ops[0]) + 1

def check(lines, name=""):
    ins = []
    for l in lines:
        for t in l.split("\n"):
            t = t.split(";")[0].strip()
            if not t or t.endswith(":") or t.startswith("."): continue
            ins.append(Ins(t))
    errs = []
    def ov(a, b): return set(a) & set(b)
    tm = []; t = 0; last = None
    for c in ins:
        if c.kind == "mfma":
            if last is not None: t = max(t, last)
            last = t + c.passes
        tm.append(t); t += c.states
    for i, c in enumerate(ins):
        d = 0
        for j in range(i - 1, max(-1, i - 24), -1):
            p = ins[j]
            need = 0; why = ""
            if p.kind == "valu":
                vd = [r for r in p.defs if r[0] in "va"]; sd = [r for r in p.defs if r[0] == "s"]
                if c.kind == "mfma" and ov(vd, c.uses): need, why = 2, "valu->mfma"
                if c.kind == "valu" and c.op.startswith("v_permlane") and ov(vd, c.uses): need, why = 2, "valu->permlane"
                if c.kind == "valu" and c.op.startswith(("v_readlane", "v_readfirstlane")) and ov(vd, c.uses): need, why = max(need, 1), "valu->readlane"
                if c.kind == "valu" and "dpp" in c.text and ov(vd, c.uses): need, why = 2, "valu->dpp"
                if p.op in TRANS and c.kind == "valu" and c.op not in TRANS and ov(vd, c.uses): need, why = max(need, 1), "trans->valu"
                if ("sdwa" in p.op or "op_sel" in p.mods) and c.kind == "valu" and ov(vd, c.uses + c.defs) and not p.op.startswith("v_pk_"): need, why = max(need, 1), "sdwa->valu"
                if p.op.startswith("v_dot") and ov(vd, c.uses + c.defs) and c.kind in ("valu", "mfma") and c.op != p.op: need, why = 3, "dot->"
                if c.kind == "valu" and ov(sd, c.uses): need, why = max(need, 4 if c.op.startswith(("v_readlane", "v_writelane")) else 2), "valu sgpr->valu"
                if c.kind == "vmem" and ov(sd, c.uses): need, why = 5, "valu sgpr->vmem"
            if p.kind == "mfma":
                n = 12 if p.passes == 8 else 8
                if c.kind in ("valu", "ds", "vmem") and ov(p.defs, c.uses + c.defs): need, why = n, "mfma D->" + c.kind
                if c.kind == "mfma":
                    if ov(p.defs, c.ab): need, why = n, "mfma D->AB"
                    elif ov(p.defs, c.srcc) and not (p.defs == c.srcc and p.passes == c.passes): need, why = n - 2, "mfma D->C partial"
                    elif ov(p.defs, c.defs) and not ov(p.defs, c.srcc): need, why = n, "mfma WAW"
                if c.kind == "valu" and ov(p.srcc, c.defs): need, why = max(need, 7 if p.passes == 8 else 3), why or "mfma C WAR"
            if p.kind == "salu" and ("s", "m0") in p.defs and c.kind == "vmem" and ("s", "m0") in c.uses: need, why = 1, "m0->dma"
            if p.kind == "vmem" and "store" in p.op and ("x4" in p.op or "x3" in p.op) and ov(p.sdata, c.defs): need, why = 2, "store data WAR"
            dd = max(d, tm[i] - tm[j] - 1) if p.kind == "mfma" else d
            if need > dd: errs.append(f"{name}: [{why}] need {need} got {dd}: '{p.text}' -> '{c.text}'")
            d += p.states
    lg, vm = [], []
    for c in ins:
        if c.op == "s_waitcnt":
            t = c.text
            m = re.search(r"lgkmcnt\((\d+)\)", t)
            if m:
                n = int(m.group(1))
                if n == 0: lg = []
                elif not any(x[0] == "smem" for x in lg): lg = lg[len(lg) - n:] if len(lg) > n else lg
            m = re.search(r"vmcnt\((\d+)\)", t)
            if m:
                n = int(m.group(1)); vm = vm[len(vm) - n:] if n and len(vm) > n else ([] if n == 0 else vm)
            continue
        touched = set(c.uses) | set(c.defs)
        for q, nm in ((lg, "lgkm"), (vm, "vm")):
            for x in q:
                if x[1] & touched: errs.append(f"{name}: [{nm} pending] '{x[2]}' -> '{c.text}'")
        if c.kind == "ds": lg.append(("ds", set(c.defs), c.text))
        elif c.op.startswith(("s_load", "s_memtime", "s_memrealtime")): lg.append(("smem", set(c.defs), c.text))
        elif c.kind == "vmem": vm.append(("vm", set(c.defs), c.text))
        if len(lg) > 15: errs.append(f"{name}: [lgkm overflow] at '{c.text}'")
        if len(vm) > 63: errs.append(f"{name}: [vm overflow] at '{c.text}'")
    return errs
```

```python
import sys, struct
from asmlib import check
KN = "standalone__ragged_sequences_packed_sequences__ragged_kernel"
HDR = open("standalone__ragged_sequences_packed_sequences__ragged.s.ref").read().split("; Override launch")[0]
C_SCALE = struct.unpack("<I", struct.pack("<f", (128 ** -0.5) * 1.4426950408889634))[0]
KST, VST = 8320, 8192
KBASE, VBASE = 0, 6 * KST
QBASE = VBASE + 6 * VST
LDS = QBASE + 4 * KST
TILE = 0x20000
NWG = 256
vK, vX, vV, vG, vOA, vOB, vQ, vK0 = 1, 2, 4, 3, 208, 209, 210, 211
O, S, QF, KF, VF0, VF1, P = 8, (72, 88), 104, 136, 168, 184, 200
vL0 = 212
SEL = 228
vT0, vT1, vT2, vT3 = 216, 217, 218, 219
vXw, vLw, vLr = 220, 224, 225
vA, vB = 220, 224
def R(b, n): return f"v[{b}:{b+n-1}]"
MF = "v_mfma_f32_32x32x16_bf16"
def koff(s): return (s >> 1) * 256 + (s & 1) * 32

DEF = dict(stamps=False, store_mod="nt", prio=1, la1=4, pre1=1, post1=1, pre2=1, post2=1, sdel=0, pf=0, sg="a")

def gen(**kw):
    o = dict(DEF); o.update(kw)
    stamps = o["stamps"]
    L = []; e = L.append
    def stamp(i, grp="a"):
        if stamps and (grp == o["sg"] or i in (0, 6, 7)): e(f"s_memtime s[{60+2*i}:{61+2*i}]")
    e(HDR + f"; @launch grid=({NWG},1,1) block=(512,1,1) lds={LDS}")
    e('.amdgcn_target "amdgcn-amd-amdhsa--gfx950"\n.text')
    e(f".globl {KN}\n.p2align 12\n.type {KN},@function\n{KN}:")
    i_start = len(L)
    stamp(0)
    if stamps: e("s_memrealtime s[84:85]")
    e(f"s_cmp_ge_u32 s2, {NWG}\ns_cbranch_scc1 L_end")
    e("s_load_dwordx4 s[4:7], s[0:1], 0\ns_load_dwordx2 s[8:9], s[0:1], 16\ns_load_dwordx2 s[10:11], s[0:1], 32")
    if stamps: e("s_load_dwordx2 s[12:13], s[0:1], 48")
    e("v_lshrrev_b32 v1, 6, v0\nv_and_b32 v0, 63, v0\nv_readfirstlane_b32 s14, v1")
    e("s_and_b32 s15, s2, 7\ns_lshr_b32 s16, s2, 3\ns_and_b32 s17, s16, 1\ns_lshr_b32 s16, s16, 1")
    e(f"v_lshrrev_b32 v1, 2, v0\nv_and_b32 v1, 3, v1\nv_lshlrev_b32 v1, 12, v1\nv_lshrrev_b32 v2, 4, v0\nv_lshlrev_b32 v2, 6, v2\nv_and_b32 v4, 3, v0\nv_lshlrev_b32 v4, 4, v4")
    e(f"v_add3_u32 v{vG}, v1, v2, v4")
    for i in (1, 2, 3): e(f"v_add_u32 v{vA+i}, {i*(16384-1040)}, v{vG}")
    e("s_and_b32 s3, s14, 3\ns_and_b32 s29, s3, 1\ns_cmp_eq_u32 s3, 3\ns_cselect_b32 s24, 1, 0\ns_cmp_eq_u32 s16, 2\ns_cselect_b32 s29, s24, s29")
    e("s_lshr_b32 s24, s3, 1\ns_cmp_ge_u32 s14, 4\ns_cselect_b32 s29, s24, s29")
    e("s_cmp_lt_u32 s16, 10\ns_cselect_b32 s18, 0, 865\ns_mov_b32 s19, 335\ns_cselect_b32 s19, 369, s19\ns_mov_b32 s22, 1")
    e("s_cmp_lt_u32 s16, 4\ns_cselect_b32 s18, 369, s18\ns_cselect_b32 s19, 213, s19\ns_cselect_b32 s22, 0, s22")
    e("s_sub_u32 s24, s16, s29\ns_cmp_lt_i32 s24, 2\ns_cselect_b32 s18, 582, s18\ns_cselect_b32 s19, 283, s19\ns_cselect_b32 s22, 4, s22")
    e("s_lshl_b32 s24, s15, 1\ns_add_u32 s24, s24, s17\ns_lshl_b32 s24, s24, 8\ns_lshl_b32 s25, s18, 12\ns_add_u32 s25, s25, s24")
    e("s_sub_u32 s27, s19, 1\ns_lshl_b32 s26, s27, 12\ns_add_u32 s26, s26, 256\ns_lshr_b32 s27, s27, 5")
    e("s_cmp_lt_u32 s14, 4\ns_cbranch_scc1 L_compute")
    i_common = len(L)
    for i in (1, 2, 3): e(f"v_add_u32 v{vB+i}, {i*(16384-1024)}, v{vG}")
    e("s_mov_b32 s38, s26\ns_mov_b32 s39, 0x00020000\ns_mov_b32 s42, s26\ns_mov_b32 s43, 0x00020000")
    e("s_lshl_b32 s28, s27, 17\ns_mov_b32 s55, 0")
    e("s_cmp_ge_u32 s16, 4\ns_cbranch_scc1 L_ld_S\ns_cmp_eq_u32 s16, 2\ns_cbranch_scc1 L_ld_M")
    i_ldhead = len(L)
    lpaths = {}
    def loader(name, n, ent, two, extra, step):
        npc = 4 if two else 2
        la = 2 if two else min(o["la1"], 5)
        out = []
        def phys(idx): return 2 * (idx % 3) + (0 if two else (idx % 6) // 3)
        def kt(idx, so):
            e(f"s_add_u32 m0, s48, {phys(idx)*KST}")
            if so == "s55": e("s_mov_b32 s57, s55")
            else: e("s_nop 0")
            for i in range(npc): e(f"buffer_load_dwordx4 v{vA+i if i else vG}, s[36:39], {so} offen" + (f" offset:{i*1040}" if i else "") + " lds")
        def vt(idx):
            e(f"s_add_u32 m0, s52, {phys(idx)*VST}\ns_add_u32 s55, s55, {step}")
            for i in range(npc): e(f"buffer_load_dwordx4 v{vB+i if i else vG}, s[40:43], s56 offen" + (f" offset:{i*1024}" if i else "") + " lds")
            e("s_mov_b32 s56, s57")
        def grp(g):
            if g >= n: return
            if g < n - 1: kt(ent + g, "s55")
            vt(ent + g)
            out.append((g, npc * (2 if g < n - 1 else 1)))
        def wait(g):
            k = [x[0] for x in out].index(g)
            c = sum(x[1] for x in out[k + 1:])
            e(f"s_waitcnt vmcnt({c})")
        e("s_mov_b32 s56, s28\ns_waitcnt lgkmcnt(0)")
        e("s_add_u32 s36, s6, s25\ns_addc_u32 s37, s7, 0")
        if name == "S6" and o["sdel"]: e("s_barrier")
        kt(ent + 5, "s28"); out.append((-1, npc))
        e("s_add_u32 s40, s8, s25\ns_addc_u32 s41, s9, 0")
        pre = min(o["pre2"] if two else o["pre1"], la); post = min(o["post2"] if two else o["post1"], la)
        nxt = 0
        def upto(g):
            nonlocal nxt
            while nxt <= g: grp(nxt); nxt += 1
        upto(pre - 1)
        for _ in range(extra): e("s_barrier")
        wait(-1); e("s_barrier")
        upto(post - 1)
        for k in range(1, n + 1):
            wait(k - 1); e("s_barrier")
            upto(k + la - 1)
        e("s_endpgm")
    i0 = len(L)
    e(f"s_lshl_b32 s24, s3, 15\ns_add_u32 s28, s28, s24\ns_add_u32 s55, s55, s24\ns_mul_i32 s48, s3, 2080\ns_lshl_b32 s52, s3, 11\ns_add_u32 s52, s52, {VBASE}")
    e("s_cmp_eq_u32 s16, 3\ns_cbranch_scc1 L_ld_B7")
    i1 = len(L); loader("B9", 9, 4, False, 0, TILE); lpaths["B9"] = L[i_start:]
    i2 = len(L); e("L_ld_B7:"); loader("B7", 7, 0, False, 0, TILE); lpaths["B7"] = L[i_start:i1] + L[i2:]
    def two_setup():
        e(f"s_and_b32 s24, s3, 1\ns_mul_i32 s48, s24, 4160\ns_mul_i32 s30, s29, {KST}\ns_add_u32 s48, s48, s30")
        e(f"s_lshl_b32 s52, s24, 12\ns_lshl_b32 s30, s29, 13\ns_add_u32 s52, s52, s30\ns_add_u32 s52, s52, {VBASE}")
        e("s_lshl_b32 s24, s24, 16\ns_add_u32 s28, s28, s24\ns_add_u32 s55, s55, s24")
    i2 = len(L); e("L_ld_S:")
    e(f"s_cmp_eq_u32 s29, 0\ns_cselect_b32 s28, s28, {10*TILE}\ns_cselect_b32 s55, {TILE}, 0")
    two_setup(); loader("S6", 6, 1, True, 0, 2 * TILE); lpaths["S6"] = L[i_start:i_ldhead] + L[i2:]
    i2 = len(L); e("L_ld_M:"); two_setup()
    e("s_cmp_eq_u32 s29, 0\ns_cbranch_scc1 L_ld_M7")
    i3 = len(L); loader("M9", 9, 4, True, 0, TILE); lpaths["M9"] = L[i_start:i_ldhead] + L[i2:]
    i4 = len(L); e("L_ld_M7:"); loader("M7", 7, 0, True, 2, TILE); lpaths["M7"] = L[i_start:i_ldhead] + L[i2:i3] + L[i4:]
    i_c = len(L)
    e(".p2align 6\nL_compute:")
    if o["prio"]: e(f"s_setprio {o['prio']}")
    e("s_lshl_b32 s21, s16, 2\ns_cmp_eq_u32 s16, 2\ns_cselect_b32 s21, s29, s21\ns_cselect_b32 s24, 4, 0\ns_add_u32 s21, s21, s24")
    e("s_cmp_eq_u32 s16, 3\ns_cselect_b32 s21, 0, s21\ns_add_u32 s21, s21, s3")
    e("s_cmp_lt_u32 s16, 10\ns_cselect_b32 s24, 4, 10\ns_sub_u32 s24, s16, s24\ns_lshl_b32 s24, s24, 1\ns_lshr_b32 s30, s3, 1\ns_add_u32 s24, s24, s30")
    e("s_cmp_ge_u32 s16, 4\ns_cselect_b32 s59, 1, 0\ns_cselect_b32 s21, s24, s21\ns_cselect_b32 s24, s29, 0")
    e(f"s_lshl_b32 s31, s21, 17\ns_mul_i32 s48, s3, {KST}\ns_add_u32 s48, s48, {QBASE}")
    e(f"s_mul_i32 s30, s24, {KST}\ns_sub_u32 s50, s48, s30\ns_mul_i32 s30, s24, 4160\ns_add_u32 s49, s50, s30")
    e("s_lshl_b32 s24, s24, 16\ns_add_u32 s51, s31, s24\ns_mov_b32 m0, s49")
    e("s_mov_b32 s34, s26\ns_mov_b32 s35, 0x00020000")
    e("s_waitcnt lgkmcnt(0)")
    e("s_add_u32 s32, s4, s25\ns_addc_u32 s33, s5, 0")
    def qb():
        for i in range(4): e(f"buffer_load_dwordx4 v{vA+i if i else vG}, s[32:35], s51 offen" + (f" offset:{i*1040}" if i else "") + " lds")
    if o["sdel"]: e("s_cmp_lg_u32 s59, 0\ns_cbranch_scc1 L_q1")
    qb()
    if not o["sdel"]: e("s_cmp_lg_u32 s59, 0\ns_cbranch_scc1 L_q1")
    e("s_add_u32 m0, s49, 4160\ns_add_u32 s51, s51, 65536")
    qb()
    e("L_q1:")
    stamp(1)
    e("s_add_u32 s44, s10, s25\ns_addc_u32 s45, s11, 0\ns_mov_b32 s46, s26\ns_mov_b32 s47, 0x00020000")
    e("s_add_u32 s36, s6, s25\ns_addc_u32 s37, s7, 0\ns_mov_b32 s38, s26\ns_mov_b32 s39, 0x00020000")
    e("s_add_u32 s40, s8, s25\ns_addc_u32 s41, s9, 0\ns_mov_b32 s42, s26\ns_mov_b32 s43, 0x00020000")
    e("s_lshl_b32 s24, s27, 5\ns_sub_u32 s23, s19, s24\ns_cmp_lt_u32 s16, 10\ns_cselect_b32 s24, 32, 0\ns_and_b32 s30, s59, s29\ns_cselect_b32 s23, s24, s23")
    e("s_xor_b32 s30, s29, 1\ns_and_b32 s30, s30, s59\ns_cmp_eq_u32 s16, 2\ns_cselect_b32 s28, 1, s59")
    e("s_lshr_b32 s24, s22, 2\ns_cmp_lg_u32 s28, 0\ns_cselect_b32 s29, s29, s24")
    e(f"s_cselect_b32 s54, 0, {KST}\ns_cselect_b32 s55, 0, {VST}\ns_cselect_b32 s56, s29, 0\ns_cselect_b32 s24, 4, 5")
    e("s_cmp_eq_u32 s22, 0\ns_cselect_b32 s24, s24, s29")
    e("s_cmp_eq_u32 s22, 4\ns_cselect_b32 s27, 1, 0\ns_cselect_b32 s57, -1, 1\ns_mul_i32 s54, s54, s57\ns_mul_i32 s55, s55, s57")
    if stamps: e("s_lshl_b32 s20, s16, 4\ns_add_u32 s20, s20, s22")
    e("s_lshl_b32 s57, s30, 6\ns_add_u32 s92, s31, s57\ns_add_u32 s93, s92, 4096\ns_xor_b32 s94, s92, 64\ns_xor_b32 s95, s93, 64")
    e(f"v_and_b32 v{vT0}, 31, v0\nv_lshrrev_b32 v{vT1}, 5, v0\nv_and_b32 v{vT2}, 3, v0")
    e(f"v_lshrrev_b32 v{vT3}, 2, v{vT0}\nv_mul_u32_u24 v{vK}, 1040, v{vT3}\nv_lshl_add_u32 v{vK}, v{vT2}, 6, v{vK}\nv_lshl_add_u32 v{vK}, v{vT1}, 4, v{vK}")
    e(f"v_add_u32 v{vQ}, s50, v{vK}\ns_mul_i32 s24, s24, {KST}\nv_add_u32 v{vK0}, s24, v{vK}\ns_mul_i32 s24, s29, {KST}\nv_add_u32 v{vK}, s24, v{vK}")
    e(f"v_lshlrev_b32 v{vOA}, 14, v{vT3}\nv_lshl_add_u32 v{vOA}, v{vT1}, 7, v{vOA}\nv_lshl_add_u32 v{vOA}, v{vT2}, 4, v{vOA}")
    e(f"v_lshl_add_u32 v{vOA}, v{vT1}, 13, v{vOA}\nv_xor_b32 v{vOB}, 0x2000, v{vOA}")
    e(f"s_xor_b32 s24, s3, 1\ns_mul_i32 s24, s24, {KST}\ns_add_u32 s24, s24, {QBASE}")
    e(f"v_lshl_add_u32 v{vXw}, v0, 4, s48\nv_lshl_add_u32 v{vX}, v0, 4, s24\nv_lshl_add_u32 v{vLw}, v{vT0}, 2, s48\nv_lshl_add_u32 v{vLr}, v{vT0}, 2, s24")
    e(f"v_and_b32 v{vT3}, 1, v0\nv_mul_u32_u24 v{vV}, 544, v{vT3}\nv_lshl_add_u32 v{vV}, v{vT1}, 10, v{vV}")
    e(f"v_bfe_u32 v{vT3}, v0, 2, 2\nv_lshl_add_u32 v{vV}, v{vT3}, 6, v{vV}\nv_bfe_u32 v{vT3}, v0, 4, 1\nv_lshl_add_u32 v{vV}, v{vT3}, 4, v{vV}")
    e(f"v_bfe_u32 v{vT3}, v0, 1, 1\nv_lshl_add_u32 v{vV}, v{vT3}, 3, v{vV}")
    e(f"s_lshl_b32 s24, s30, 8\nv_xor_b32 v{vV}, s24, v{vV}\nv_xor_b32 v{vV+1}, 32, v{vV}\nv_xor_b32 v{vV+2}, 0x100, v{vV}\nv_xor_b32 v{vV+3}, 0x120, v{vV}")
    e(f"s_lshl_b32 s24, s29, 13\ns_add_u32 s24, s24, {VBASE}")
    for t in range(4): e(f"v_add_u32 v{vV+t}, s24, v{vV+t}")
    def mask(dsts, srem):
        e(f"v_lshlrev_b32 v{vT2}, 2, v{vT1}\nv_sub_u32 v{vT2}, {srem}, v{vT2}\nv_mov_b32 v{vT0}, 0xff800000")
        for r in range(16):
            e(f"v_cmp_lt_i32 vcc, {8*(r>>2)+(r&3)}, v{vT2}\ns_nop 1")
            for d in dsts: e(f"v_cndmask_b32 v{d+r}, v{vT0}, 0, vcc")
    mask(S, "s23")
    for r in range(64): e(f"v_mov_b32 v{O+r}, 0")
    for r in range(4): e(f"v_mov_b32 v{vL0+r}, 0")
    e(f"v_lshrrev_b32 v{vT2}, 2, v0\nv_xor_b32 v{vT2}, v{vT2}, v0\nv_bfe_u32 v{vT2}, v{vT2}, 2, 1\nv_subrev_u32 v{vT2}, 1, v{vT2}")
    for r in range(4): e(f"v_and_b32 v{SEL+r}, 0x3f803f80, v{vT2}")
    e(f"s_mov_b32 s52, 0x{C_SCALE:08x}\ns_mov_b32 s53, s52\ns_mov_b32 s96, 0x55555555\ns_mov_b32 s97, s96\ns_mov_b32 s98, 0x33333333\ns_mov_b32 s99, 0xcccccccc")
    if o["sdel"]:
        e("s_cmp_eq_u32 s59, 0\ns_cbranch_scc1 L_q2")
        qb()
        e("s_barrier\nL_q2:")
    e("s_cmp_eq_u32 s22, 0\ns_cselect_b32 s24, s28, 0\ns_cmp_eq_u32 s24, 0\ns_cbranch_scc1 L_nox\ns_barrier\ns_barrier\nL_nox:")
    e("s_cmp_eq_u32 s22, 1")
    e("s_waitcnt vmcnt(0)")
    stamp(2)
    e("s_barrier")
    stamp(3)
    K0 = VF0
    def qk(s): return [f"ds_read_b128 {R(QF+4*s,4)}, v{vQ} offset:{koff(s)}", f"ds_read_b128 {R(K0+4*s,4)}, v{vK0} offset:{koff(s)}"]
    for s in range(5):
        for x in qk(s): e(x)
    e("s_cbranch_scc1 L_pro1\ns_cmp_eq_u32 s22, 0\ns_cbranch_scc1 L_pro0")
    i_pro = len(L)
    def kread(idx, s): return f"ds_read_b128 {R(KF+4*s,4)}, v{vK} offset:{2*(idx%3)*KST+koff(s)}"
    def vread(idx, m, t, jj): return f"ds_read_b64_tr_b16 {R((VF0,VF1)[m]+4*t+2*jj,2)}, v{vV+t} offset:{2*(idx%3)*VST+(4*m+2*jj)*1024}"
    def pv(m, t): return f"{MF} {R(O+16*t,16)}, {R((VF0,VF1)[m]+4*t,4)}, {R(P+4*m,4)}, {R(O+16*t,16)}"
    def sm(b, s, kf=KF, first0=True): return f"{MF} {R(b,16)}, {R(kf+4*s,4)}, {R(QF+4*s,4)}, " + ("0" if s == 0 and first0 else R(b, 16))
    def ex(b, r): return f"v_exp_f32 v{b+r}, v{b+r}"
    def pm(b, p): return f"v_pk_mul_f32 {R(b+2*p,2)}, {R(b+2*p,2)}, s[52:53]"
    def mu(b, r): return f"v_mul_f32 v{b+r}, s52, v{b+r}"
    def ls(m): return f"v_mfma_f32_16x16x32_bf16 {R(vL0,4)}, {R(SEL,4)}, {R(P+4*m,4)}, {R(vL0,4)}"
    def cv(b, k): return f"v_cvt_pk_bf16_f32 v{P+k}, v{b+2*k}, v{b+2*k+1}"
    pro = {}
    for ent in (4, 0, 1):
        i0 = len(L)
        if ent != 4: e(f"L_pro{ent}:")
        cur, nxt = S[ent & 1], S[(ent + 1) & 1]
        for s in range(8):
            if s < 5: e(f"s_waitcnt lgkmcnt({8 if s < 4 else 6})")
            e(sm(cur, s, K0, False))
            if s < 3:
                for x in qk(5 + s): e(x)
            if s == 4: e("s_waitcnt lgkmcnt(0)\ns_barrier")
            if s >= 4: e(kread(ent, 2 * s - 8)); e(kread(ent, 2 * s - 7))
        F = [[] for _ in range(8)]
        for g in range(8): F[g] += [vread(ent, g >> 2, g & 3, 0), vread(ent, g >> 2, g & 3, 1)]
        F[0] += ["s_nop 1", mu(cur, 0), mu(cur, 1), mu(cur, 2), ex(cur, 0)]
        for s in range(1, 7):
            F[s] += [mu(cur, 2 * s + 1), ex(cur, 2 * s - 1), mu(cur, 2 * s + 2), ex(cur, 2 * s)]
            if s >= 2: F[s].append(cv(cur, s - 2))
        F[7] += [ex(cur, 13), cv(cur, 5)]
        for s in range(8):
            if s in (0, 2, 4, 6): e(f"s_waitcnt lgkmcnt({(4, 0, 6, 0, 8, 0, 8)[s]})")
            e(sm(nxt, s))
            for x in F[s]: e(x)
        stamp(4)
        e(f"s_branch L_mid{ent}")
        pro[ent] = L[i0:]
    bodies = []; mids = {}
    for j in range(6):
        i0 = len(L)
        cur, nxt = S[j & 1], S[(j + 1) & 1]
        e(f"L_body{j}:")
        rd = [[] for _ in range(16)]; va = [[] for _ in range(16)]
        for t in range(4):
            rd[12 + t] += [kread(j + 1, t), vread(j + 1, 0, t, 0)]
            rd[t] += [kread(j, 4 + t), vread(j, 0, t, 1)]
        m1 = [vread(j, 1, t, jj) for t in range(4) for jj in (0, 1)]
        for g, xs in zip((4, 5, 6, 7, 8, 9), ((0, 1), (2,), (3, 4), (5,), (6,), (7,))): rd[g] += [m1[x] for x in xs]
        for g in range(16): va[g].append(mu(cur, g + 3) if g < 13 else mu(nxt, g - 13))
        for g, k in ((5, 2), (7, 3), (9, 4), (10, 5), (14, 7)): va[g].append(cv(cur, k))
        if j % 3 == 2:
            va[4].append(f"v_add_u32 v{vK}, s54, v{vK}")
            for g, t in ((5, 0), (8, 1), (9, 2), (10, 3)): va[g].append(f"v_add_u32 v{vV+t}, s55x, v{vV+t}")
        for g in range(16):
            if g == 12:
                mids[j] = len(L) - i0
                e(f"L_mid{j}:")
                e(ls(0)); e(cv(cur, 6)); e("s_waitcnt lgkmcnt(0)")
            if g == 4: e(ls(1)); e(cv(cur, 0)); e(cv(cur, 1))
            if g == 3: e("s_waitcnt lgkmcnt(6)")
            if g == 8: e(f"s_waitcnt lgkmcnt({sum(len(rd[x]) for x in range(4, 8))})")
            e(pv(1, g) if g < 4 else sm(nxt, g - 4) if g < 12 else pv(0, g - 12))
            if g == 12: e("s_barrier")
            for x in rd[g]: e(x)
            for x in va[g]: e(x.replace("s55x", "s55"))
            e(ex(cur, g + 2) if g < 14 else ex(nxt, g - 14))
            if g == 11 and j % 3 == 2: e("s_sub_u32 s54, 0, s54\ns_sub_u32 s55, 0, s55")
            if g == 13 and j == 5: e("s_sub_u32 s27, s27, 1")
        if j == 5: e("s_cbranch_scc0 L_body0")
        bodies.append(L[i0:])
    i0 = len(L)
    stamp(5); stamp(1, "e")
    cur = S[0]
    m0r = [vread(0, 0, t, 1) for t in range(4)]
    m1 = [vread(0, 1, t, jj) for t in range(4) for jj in (0, 1)]
    LO, HI = 0x33800000, 0x4b800000
    chk = [f"v_subrev_u32 v{vT1}, 0x{LO:08x}, v{vL0}", f"v_rcp_f32 v{vT0}, v{vL0}", f"v_cmp_lt_u32 vcc, 0x{HI-LO:08x}, v{vT1}"]
    T = [
        [pv(1, 0), m0r[0], m0r[1], cv(cur, 0), ex(cur, 2), mu(cur, 3), mu(cur, 4)],
        [pv(1, 1), m0r[2], m0r[3], ex(cur, 3), mu(cur, 5), ex(cur, 4), mu(cur, 6)],
        [pv(1, 2), m1[0], m1[1], ex(cur, 5), mu(cur, 7), cv(cur, 1), ex(cur, 6), "s_waitcnt lgkmcnt(6)"],
        [pv(1, 3), ex(cur, 7), cv(cur, 2), mu(cur, 8), mu(cur, 9), cv(cur, 3)],
        [ls(1), m1[2], m1[3], "s_waitcnt lgkmcnt(4)"],
        [pv(0, 0), m1[4], m1[5], ex(cur, 8), mu(cur, 10), ex(cur, 9), mu(cur, 11)],
        [pv(0, 1), m1[6], m1[7], ex(cur, 10), mu(cur, 12), ex(cur, 11), mu(cur, 13)],
        [pv(0, 2), ex(cur, 12), mu(cur, 14), ex(cur, 13), mu(cur, 15), cv(cur, 4)],
        [pv(0, 3), ex(cur, 14), cv(cur, 5), ex(cur, 15), cv(cur, 6)],
        [ls(0), cv(cur, 7), "s_cmp_lg_u32 s59, 0", "s_waitcnt lgkmcnt(0)"],
        [ls(1)], [pv(1, 0)], [pv(1, 1)] + chk, [pv(1, 2)], [pv(1, 3)],
    ]
    for g in T:
        for x in g: e(x)
    stamp(2, "e")
    e("s_cbranch_scc1 L_comb\ns_cbranch_vccnz L_fb")
    tail = L[i0:]
    CB, DB, EB = (KF, QF), (KF + 16, QF + 16), (VF0, VF1)
    def scale(t, scalar=False):
        b = O + 16 * t; c = CB[t >> 1] + 8 * (t & 1); r = []
        for k in range(0, 8, 2):
            if scalar: r += [f"v_mul_f32 v{b+2*k+q}, v{vT0}, v{b+2*k+q}" for q in range(4)]
            else: r += [f"v_pk_mul_f32 {R(b+2*k+q,2)}, {R(b+2*k+q,2)}, {R(vT0,2)} op_sel_hi:[1,0]" for q in (0, 2)]
            if k: r += [f"v_cvt_pk_bf16_f32 v{c+k-2+q}, v{b+2*(k-2+q)}, v{b+2*(k-2+q)+1}" for q in (0, 1)]
        return r + [f"v_cvt_pk_bf16_f32 v{c+6+q}, v{b+2*(6+q)}, v{b+2*(6+q)+1}" for q in (0, 1)]
    def sel(d, own, oth, qp): return [f"v_cndmask_b32_dpp v{d+r}, v{oth+r}, v{own+r}, vcc quad_perm:{qp} row_mask:0xf bank_mask:0xf" for r in range(4)]
    def st1(p, k): return sel(DB[p] + 4 * k, CB[p] + 4 * k, CB[p] + 4 * (k ^ 1), "[1,0,3,2]")
    def st2(p):
        r = ["s_mov_b64 vcc, s[98:99]"]
        for k in range(4):
            if k == 2: r.append("s_not_b64 vcc, vcc")
            r += sel(EB[p] + 4 * k, DB[p] + 4 * k, DB[p] + 4 * (k ^ 2), "[2,3,0,1]")
            r.append(f"buffer_store_dwordx4 {R(EB[p]+4*k,4)}, v{(vOA,vOB)[k>>1]}, s[44:47], s{92+2*p+(k&1)} offen {o['store_mod']}")
        return r
    def weave(sels, oth):
        oth = list(oth); c = 0
        for x in sels:
            if x.startswith("v_cndmask"):
                if c == 2:
                    e(oth.pop(0) if oth else f"v_mov_b32 v{vT3}, v{vT2}"); c = 0
                c += 1
            e(x)
        for x in oth: e(x)
    M1, NM = "s_mov_b64 vcc, s[96:97]", "s_not_b64 vcc, vcc"
    i0 = len(L)
    e("L_epi:")
    for x in scale(0, True) + scale(1): e(x)
    stamp(3, "e")
    weave([M1] + st1(0, 0) + st1(0, 2) + [NM] + st1(0, 1) + st1(0, 3) + st2(0), scale(2))
    i_b1 = len(L)
    e("L_blk1:")
    stamp(4, "e")
    s3 = scale(3)
    e(s3[0]); e(s3[1])
    weave([M1] + st1(1, 0) + [NM] + st1(1, 1), s3[2:])
    stamp(5, "e")
    weave(st1(1, 3) + [NM] + st1(1, 2) + st2(1), [])
    if stamps:
        stamp(6)
        e("s_waitcnt vmcnt(0)")
        stamp(7)
        e("s_memrealtime s[86:87]\ns_waitcnt lgkmcnt(0)")
        e("s_lshl_b32 s55, s2, 2\ns_add_u32 s55, s55, s14\ns_lshl_b32 s55, s55, 6")
        e("s_add_u32 s88, s12, s55\ns_addc_u32 s89, s13, 0\ns_mov_b32 s90, 64\ns_mov_b32 s91, 0x00020000")
        e("v_mov_b32 v4, 0")
        for i, r in enumerate([60, 62, 64, 66, 68, 70, 72, 74, 84, 86, 20, 2]): e(f"v_writelane_b32 v4, s{r}, {i}")
        e("v_lshlrev_b32 v1, 2, v0\nbuffer_store_dword v4, v1, s[88:91], 0 offen")
    e("L_end:\ns_endpgm")
    epi = L[i0:]; blk1 = L[i_b1:]
    i0 = len(L)
    e("L_comb:")
    for k in range(8):
        e(f"ds_write_b128 v{vXw}, {R(O+4*k,4)} offset:{k*1024}")
        if k == 3: e(f"ds_write_b32 v{vLw}, v{vL0} offset:8192")
    e("s_waitcnt lgkmcnt(0)\ns_barrier")
    e(f"ds_read_b32 v{vT2}, v{vLr} offset:8192")
    for k in range(8): e(f"ds_read_b128 {R(O+4*k,4)}, v{vX} offset:{k*1024}")
    e(f"s_waitcnt lgkmcnt(8)\nv_add_f32 v{vL0}, v{vL0}, v{vT2}")
    for x in chk: e(x)
    for k in range(8):
        e(f"s_waitcnt lgkmcnt({7-k})")
        for q in (0, 2): e(f"v_pk_add_f32 {R(O+32+4*k+q,2)}, {R(O+32+4*k+q,2)}, {R(O+4*k+q,2)}")
    e("s_cbranch_vccnz L_fb")
    stamp(3, "e")
    for x in scale(2): e(x)
    e("s_branch L_blk1")
    comb = L[i0:]
    i0 = len(L)
    e("L_fb:")
    e(f"s_lshl_b32 s24, s56, 13\ns_add_u32 s24, s24, {VBASE}\ns_sub_u32 s24, s48, s24\ns_mov_b32 s55, 0\ns_mul_i32 s57, s56, {KST}\ns_sub_u32 s57, s48, s57\ns_mov_b32 s56, s19\ns_nop 7")
    for r in range(64): e(f"v_mov_b32 v{O+r}, 0")
    vM = vT3
    e(f"v_mov_b32 v{vL0}, 0\nv_mov_b32 v{vM}, 0xff800000\nv_lshrrev_b32 v{vT1}, 5, v0\nv_add_u32 v{vK}, s57, v{vK}")
    for t in range(4): e(f"v_add_u32 v{vV+t}, s24, v{vV+t}")
    e("L_fb_loop:")
    e("s_mov_b32 s51, s55\ns_mov_b32 s57, s48")
    for a in range(8):
        e(f"s_mov_b32 m0, s57\ns_add_u32 s57, s57, 1040\nbuffer_load_dwordx4 v{vG}, s[36:39], s51 offen lds\ns_add_u32 s51, s51, 16384")
    mask([S[0]], "s56")
    e("s_waitcnt vmcnt(0)")
    for s in range(8): e(kread(0, s))
    e("s_waitcnt lgkmcnt(0)")
    e("s_mov_b32 s51, s55\ns_mov_b32 s57, s48")
    for a in range(8):
        e(f"s_mov_b32 m0, s57\ns_add_u32 s57, s57, 1024\nbuffer_load_dwordx4 v{vG}, s[40:43], s51 offen lds\ns_add_u32 s51, s51, 16384")
    for s in range(8): e(sm(S[0], s, KF, False))
    e("s_nop 7\ns_nop 3")
    for p in range(8): e(pm(S[0], p))
    e(f"v_max3_f32 v{vT0}, v{S[0]}, v{S[0]+1}, v{vM}")
    for r in range(2, 16, 2): e(f"v_max3_f32 v{vT0}, v{S[0]+r}, v{S[0]+r+1}, v{vT0}")
    e(f"v_mov_b32 v{vT2}, v{vT0}\ns_nop 1\nv_permlane32_swap_b32 v{vT2}, v{vT0}\nv_max_f32 v{vT0}, v{vT2}, v{vT0}")
    e(f"v_sub_f32 v{vT2}, v{vM}, v{vT0}\nv_exp_f32 v{vT2}, v{vT2}\nv_mov_b32 v{vM}, v{vT0}")
    e(f"v_mul_f32 v{vL0}, v{vL0}, v{vT2}")
    for r in range(64): e(f"v_mul_f32 v{O+r}, v{O+r}, v{vT2}")
    for r in range(16): e(f"v_sub_f32 v{S[0]+r}, v{S[0]+r}, v{vM}")
    for r in range(16): e(ex(S[0], r))
    e("s_nop 0")
    for r in range(16): e(f"v_add_f32 v{vL0}, v{vL0}, v{S[0]+r}")
    for k in range(8): e(cv(S[0], k))
    e("s_waitcnt vmcnt(0)")
    allv = [vread(0, m, t, jj) for m in (0, 1) for t in range(4) for jj in (0, 1)]
    for x in allv[:15]: e(x)
    e("s_waitcnt lgkmcnt(0)")
    e(allv[15])
    e("s_waitcnt lgkmcnt(0)")
    for m in (0, 1):
        for t in range(4): e(pv(m, t))
    e("s_add_u32 s55, s55, 0x20000\ns_sub_u32 s56, s56, 32\ns_cmp_gt_i32 s56, 0\ns_cbranch_scc1 L_fb_loop")
    e(f"v_mov_b32 v{vT0}, v{vL0}\ns_nop 1\nv_permlane32_swap_b32 v{vT0}, v{vL0}\ns_nop 7\nv_add_f32 v{vL0}, v{vL0}, v{vT0}\nv_rcp_f32 v{vT0}, v{vL0}\ns_branch L_epi")
    fb = L[i0:]
    e(f""".section .rodata,"a"
.p2align 6
.amdhsa_kernel {KN}
  .amdhsa_next_free_vgpr 232
  .amdhsa_next_free_sgpr 100
  .amdhsa_accum_offset 232
  .amdhsa_group_segment_fixed_size 0
  .amdhsa_kernarg_size 56
  .amdhsa_user_sgpr_count 2
  .amdhsa_user_sgpr_kernarg_segment_ptr 1
  .amdhsa_system_sgpr_workgroup_id_x 1
.end_amdhsa_kernel""")
    errs = []
    for k, p in lpaths.items(): errs += check(p, "ld" + k)
    if not stamps:
        head = L[i_start:i_common] + L[i_c:i_pro]
        allb = sum(bodies, [])
        for ent in (4, 0, 1):
            path = head + pro[ent] + bodies[ent][mids[ent]:] + sum(bodies[ent + 1:], []) + (allb if ent == 4 else []) + tail
            errs += check(path + (comb + blk1 if ent == 1 else epi), f"e{ent}")
        fl = fb.index("L_fb_loop:")
        errs += check(tail + fb + fb[fl:] + epi, "fb")
        errs += check(tail + comb + fb + fb[fl:] + epi, "fbS")
    for x in sorted(set(errs)): print("HAZARD", x)
    return "\n".join(L) + "\n"

if __name__ == "__main__":
    B = dict(pre1=2, post1=2, pre2=1, post2=2, sdel=1)
    open("v2.s", "w").write(gen(**B))
    open("v2_st.s", "w").write(gen(stamps=True, **B))
    open("v2_e_st.s", "w").write(gen(stamps=True, sg="e", **B))
```
